```python
import torch

def _softmax(x, axis=-1):
    return torch.softmax(x, dim=axis)
def _gelu(x):
    return torch.nn.functional.gelu(x, approximate="tanh")
def _silu(x):
    return torch.nn.functional.silu(x)
def _sigmoid(x):
    return torch.sigmoid(x)
def _layernorm(x, axis=-1, eps=1e-5):
    m = x.mean(dim=axis, keepdim=True)
    v = x.var(dim=axis, keepdim=True, unbiased=False)
    return (x - m) / torch.sqrt(v + eps)
def _scatter_add(tgt, idx, src, axis=0):
    return tgt.clone().index_add_(axis, idx, src)
def _segment_sum(src, seg, n):
    out = torch.zeros((n,) + src.shape[1:], dtype=src.dtype)
    return out.index_add_(0, seg, src)
def _pad(x, pw):
    flat = tuple(v for pair in reversed(pw) for v in pair)
    return torch.nn.functional.pad(x, flat)

kernel_name = 'sequential_preLN__ssm_conv_s4__glu_gated_bilinear__prompt'

def setup_inputs():

    _w = (lambda a: (lambda t: t.to(torch.bfloat16) if t.is_floating_point() else t)(torch.as_tensor(a)))
    def _A_setup():
        B, L, D, N = 1, 2048, 448, 256
        A_re = -(lambda _x: torch.exp(torch.as_tensor(_x)))((lambda *s: torch.randn(*s, dtype=torch.bfloat16) * 3.2)(D, N))
        A_im = torch.pi * (lambda *s: torch.randn(*s, dtype=torch.bfloat16) * 0.05)(D, N)
        B_re = (lambda *s: torch.randn(*s, dtype=torch.bfloat16) * 0.05)(D, N)
        B_im = (lambda *s: torch.randn(*s, dtype=torch.bfloat16) * 0.05)(D, N)
        C_re = (lambda *s: torch.randn(*s, dtype=torch.bfloat16) * 0.05)(D, N)
        C_im = (lambda *s: torch.randn(*s, dtype=torch.bfloat16) * 0.05)(D, N)
        log_dt = (lambda *s: torch.randn(*s, dtype=torch.bfloat16) * 0.05)(D) * 0.5 - 4.0
        Dskip = (lambda *s: torch.randn(*s, dtype=torch.bfloat16) * 0.05)(D)
        return {
            "u": _w((lambda *s: torch.randn(*s, dtype=torch.bfloat16) * 0.05)(B, L, D)),
            "A_re": _w(A_re),
            "A_im": _w(A_im),
            "B_re": _w(B_re),
            "B_im": _w(B_im),
            "C_re": _w(C_re),
            "C_im": _w(C_im),
            "log_dt": _w(log_dt),
            "Dskip": _w(Dskip),
        }
    _A_in = _A_setup()

    def _B_setup():
        B, S, D, F = 1, 2048, 448, 1792
        return {
            "x": _w((lambda *s: torch.randn(*s, dtype=torch.bfloat16) * 0.05)(B, S, D)),
            "w_gate": _w((lambda *s: torch.randn(*s, dtype=torch.bfloat16) * 0.4)(D, F) * (D ** -0.5)),
            "w_up": _w((lambda *s: torch.randn(*s, dtype=torch.bfloat16) * 0.4)(D, F) * (D ** -0.5)),
            "w_down": _w((lambda *s: torch.randn(*s, dtype=torch.bfloat16) * 0.4)(F, D) * (F ** -0.5)),
        }
    _B_in = _B_setup()

    return {
        "A_u": _A_in["u"],
        "A_A_re": _A_in["A_re"],
        "A_A_im": _A_in["A_im"],
        "A_B_re": _A_in["B_re"],
        "A_B_im": _A_in["B_im"],
        "A_C_re": _A_in["C_re"],
        "A_C_im": _A_in["C_im"],
        "A_log_dt": _A_in["log_dt"],
        "A_Dskip": _A_in["Dskip"],
        "B_x": _B_in["x"],
        "B_w_gate": _B_in["w_gate"],
        "B_w_up": _B_in["w_up"],
        "B_w_down": _B_in["w_down"],
    }

def reference(A_u, A_A_re, A_A_im, A_B_re, A_B_im, A_C_re, A_C_im, A_log_dt, A_Dskip, B_x, B_w_gate, B_w_up, B_w_down):
    def _A_ref(u, A_re, A_im, B_re, B_im, C_re, C_im, log_dt, Dskip):
        Bsz, L, D = u.shape
        dt = torch.exp(log_dt)[:, None]
        A = A_re + 1j * A_im
        Bc = B_re + 1j * B_im
        Cc = C_re + 1j * C_im
        logdA = dt * A
        dB = dt * Bc
        l = (lambda x, dt: x.to(dt))(torch.arange(L), A_re.dtype)
        P = torch.exp(logdA[:, :, None] * l[None, None, :])
        K = torch.einsum("dn,dnl,dn->dl", Cc, P, dB).real
        L2 = 2 * L
        Kp = _pad(K, ((0, 0), (0, L)))
        up = (lambda x, *d: x.permute(*d))(u, 0, 2, 1)
        up = _pad(up, ((0, 0), (0, 0), (0, L)))
        Kf = (lambda x, axes=(-2,-1): torch.fft.rfft2(x.float(), dim=axes))(Kp[:, None, :], axes=(-2, -1))
        Uf = (lambda x, axes=(-2,-1): torch.fft.rfft2(x.float(), dim=axes))(up[:, :, None, :], axes=(-2, -1))
        Yf = Uf * Kf[None, :, :, :]
        y = (lambda x, s, axes=(-2,-1): torch.fft.irfft2(x, s=s, dim=axes).to(torch.bfloat16))(Yf, (1, L2), axes=(-2, -1))[:, :, 0, :L]
        y = (lambda x, *d: x.permute(*d))(y, 0, 2, 1) + u * Dskip[None, None, :]
        return y

    def _B_ref(x, w_gate, w_up, w_down):
        g = torch.einsum("bsd,df->bsf", x, w_gate)
        u = torch.einsum("bsd,df->bsf", x, w_up)
        h = g * u
        return torch.einsum("bsf,fd->bsd", h, w_down)

    x = A_u
    h = x + _A_ref(_layernorm(x, axis=-1), A_A_re, A_A_im, A_B_re, A_B_im, A_C_re, A_C_im, A_log_dt, A_Dskip)
    h2 = h + _B_ref(_layernorm(h, axis=-1), B_w_gate, B_w_up, B_w_down)
    return h2
```

```python
class Asm:
    def __init__(self):
        self.lines = []
    def __call__(self, s):
        for ln in s.strip("\n").split("\n"):
            self.lines.append("    " + ln.strip() if ln.strip() and not ln.strip().endswith(":") else ln.strip())
    def label(self, name): self.lines.append(name + ":")
    def comment(self, s): self.lines.append("    ; " + s)
    def text(self): return "\n".join(self.lines) + "\n"

def vr(base, n=1):
    return f"v{base}" if n == 1 else f"v[{base}:{base+n-1}]"
def sr(base, n=1):
    return f"s{base}" if n == 1 else f"s[{base}:{base+n-1}]"

WS_UT = 0x000000
WS_XT = 0x200000
WS_G  = 0x400000
WS_HT = 0x600000
WS_CS = 0x800000
WS_RS = 0x810000
WS_HP = 0x1000000
G_STRIDE = 4160

def kernel_header(name):
    return f""".globl {name}
.p2align 8
.type {name},@function
{name}:
"""
def kernel_desc(name, vgpr, sgpr, accum=None):
    if accum is None: accum = (vgpr + 3) // 4 * 4
    return f""".amdhsa_kernel {name}
  .amdhsa_next_free_vgpr {vgpr}
  .amdhsa_next_free_sgpr {sgpr}
  .amdhsa_accum_offset {accum}
  .amdhsa_group_segment_fixed_size 0
  .amdhsa_kernarg_size 128
  .amdhsa_user_sgpr_count 2
  .amdhsa_user_sgpr_kernarg_segment_ptr 1
  .amdhsa_system_sgpr_workgroup_id_x 1
.end_amdhsa_kernel
"""
```

```python
from common import *
import struct

T1ROWS = list(range(8)) + [256+2*e for e in range(4)] + [512+256*a+4*e for a in range(2) for e in range(2)] + [1024+256*a for a in range(5)]
XY_WAVE = 53*272
TAB = 4*XY_WAVE
K1_LDS = TAB + 672*2 + 64

def idx_of_t(t):
    if t < 256: return t
    if t < 512: return 256 + (t-256)//2
    if t < 1024: return 384 + (t-512)//4
    return 512 + (t-1024)//8

def bf16_rne_int(j):
    u = struct.unpack("<I", struct.pack("<f", float(j)))[0]
    u = (u + 0x7FFF + ((u >> 16) & 1)) & 0xFFFF0000
    return int(struct.unpack("<f", struct.pack("<I", u))[0])

def tables():
    t1 = []; t2 = []
    for tid in range(256):
        w, lane = tid >> 6, tid & 63
        rt, ct = w >> 1, w & 1
        col = 16*ct + (lane & 15); q = lane >> 4
        for r in range(4):
            row = 16*rt + 4*q + r
            if row <= 20: t1.append(TAB + 2*idx_of_t(T1ROWS[row] + 8*col))
            else: t1.append(TAB + 672*2 + 2*(lane & 15))
        for i in range(8):
            m = 8*tid + i
            j = 2047 - m
            t2.append(TAB + 2*idx_of_t(bf16_rne_int(j)))
    return t1, t2

def cmul(a, dst, z, rho):
    a(f"v_pk_mul_f32 {vr(dst,2)}, {vr(z,2)}, {vr(rho,2)} op_sel_hi:[1,0]")
    a(f"v_pk_fma_f32 {vr(dst,2)}, {vr(z,2)}, {vr(rho,2)}, {vr(dst,2)} op_sel:[1,1,0] op_sel_hi:[0,1,1] neg_lo:[1,0,0]")

def flit(x):
    return "0x%08x" % struct.unpack("<I", struct.pack("<f", x))[0]

def gen_k1():
    a = Asm()
    a(kernel_header("k1_kernel"))
    a(f"""
    s_cmp_ge_u32 s2, 512
    s_cbranch_scc1 k1_end
    s_cmp_lt_u32 s2, 64
    s_cbranch_scc1 k1_ln
    """)
    a(f"""
    s_load_dwordx16 s[4:19], s[0:1], 8
    s_load_dwordx2 s[20:21], s[0:1], 120
    s_sub_u32 s3, s2, 64
    s_getpc_b64 s[26:27]
k1_pc:
    s_add_u32 s26, s26, k1_tab1-k1_pc
    s_addc_u32 s27, s27, 0
    v_lshlrev_b32 v1, 4, v0
    v_lshlrev_b32 v2, 5, v0
    global_load_dwordx4 v[4:7], v1, s[26:27]
    s_add_u32 s28, s26, 4096
    s_addc_u32 s29, s27, 0
    global_load_dwordx4 v[8:11], v2, s[28:29]
    global_load_dwordx4 v[12:15], v2, s[28:29] offset:16
    s_lshl_b32 s22, s3, 9
    v_lshlrev_b32 v1, 1, v0
    v_add_u32 v1, s22, v1
    v_mov_b32 v16, 0
    v_mov_b32 v17, 0
    v_mov_b32 v18, 0
    v_mov_b32 v19, 0
    v_mov_b32 v20, 0
    v_mov_b32 v21, 0
    s_lshr_b32 s23, s3, 1
    s_lshl_b32 s23, s23, 2
    s_waitcnt lgkmcnt(0)
    s_load_dword s22, s[16:17], s23
    global_load_short_d16_hi v16, v1, s[4:5]
    global_load_short_d16_hi v17, v1, s[6:7]
    global_load_short_d16_hi v18, v1, s[8:9]
    global_load_short_d16_hi v19, v1, s[10:11]
    global_load_short_d16_hi v20, v1, s[12:13]
    global_load_short_d16_hi v21, v1, s[14:15]
    v_and_b32 v2, 63, v0
    v_lshrrev_b32 v3, 6, v0
    s_mov_b32 s30, {XY_WAVE}
    v_mul_lo_u32 v3, v3, s30
    v_lshl_add_u32 v3, v2, 2, v3
    s_waitcnt lgkmcnt(0)
    s_lshl_b32 s24, s22, 16
    s_and_b32 s25, s22, 0xffff0000
    s_bitcmp1_b32 s3, 0
    s_cselect_b32 s22, s25, s24
    v_mov_b32 v22, s22
    v_mul_f32 v22, {flit(1.4426950408889634)}, v22
    v_exp_f32 v22, v22
    s_nop 0
    v_cvt_pk_bf16_f32 v22, v22, v22
    v_and_b32 v22, 0xffff0000, v22
    s_waitcnt vmcnt(0)
    v_mul_f32 v23, v22, v16
    v_mul_f32 v24, v22, v17
    v_mul_f32 v23, {flit(1.4426950408889634)}, v23
    v_mul_f32 v24, {flit(0.15915494309189535)}, v24
    v_mul_f32 v18, v22, v18
    v_mul_f32 v19, v22, v19
    v_mul_f32 v26, v20, v18
    v_mul_f32 v27, v20, v19
    v_fma_f32 v26, -v21, v19, v26
    v_fma_f32 v27, v21, v18, v27
    """)
    W, E1, E8, E256, E2, E4 = 26, 28, 30, 32, 34, 36
    def direct(dst, T):
        if T == 1:
            a("v_mov_b32 v46, v23"); a("v_fract_f32 v48, v24")
        else:
            a(f"v_mul_f32 v46, {flit(float(T))}, v23"); a(f"v_mul_f32 v48, {flit(float(T))}, v24"); a("v_fract_f32 v48, v48")
        a(f"v_exp_f32 v46, v46")
        a(f"v_cos_f32 v{dst}, v48")
        a(f"v_sin_f32 v{dst+1}, v48")
        a("s_nop 0")
        a(f"v_pk_mul_f32 {vr(dst,2)}, {vr(dst,2)}, v[46:47] op_sel_hi:[1,0]")
    direct(E8, 8); direct(E1, 1); direct(E256, 256)
    pk = [52, 53, 54, 55]; pki = [0]
    def emit_x(row, z):
        p = pk[pki[0] % 4]; pki[0] += 1
        a(f"v_cvt_pk_bf16_f32 v{p}, v{z}, -v{z+1}")
        a(f"ds_write_b32 v3, v{p} offset:{row*272}")
    def emit_y(b, z):
        p = pk[pki[0] % 4]; pki[0] += 1
        a(f"v_cvt_pk_bf16_f32 v{p}, v{z}, v{z+1}")
        a(f"ds_write_b32 v3, v{p} offset:{(21+b)*272}")
    a("v_mov_b32 v52, 0x3f80"); a(f"ds_write_b32 v3, v52 offset:{21*272}"); pki[0] = 1
    emit_y(1, E8)
    z0, z1 = 38, 40
    cur = E8
    for b in range(2, 32):
        nxt = z0 if cur != z0 else z1
        cmul(a, nxt, cur, E8); emit_y(b, nxt); cur = nxt
    emit_x(0, W)
    cur = W
    for e in range(1, 8):
        nxt = z0 if cur != z0 else z1
        cmul(a, nxt, cur, E1); emit_x(e, nxt); cur = nxt
    cmul(a, E2, E1, E1); cmul(a, E4, E2, E2)
    P0, P1 = 42, 44
    cmul(a, P0, W, E256); emit_x(8, P0)
    cur = P0
    for e in range(1, 4):
        nxt = z0 if cur != z0 else z1
        cmul(a, nxt, cur, E2); emit_x(8+e, nxt); cur = nxt
    cmul(a, P1, P0, E256); emit_x(12, P1)
    cmul(a, z0, P1, E4); emit_x(13, z0)
    cmul(a, P0, P1, E256); emit_x(14, P0)
    cmul(a, z0, P0, E4); emit_x(15, z0)
    cur, oth = P0, P1
    for r in range(16, 21):
        cmul(a, oth, cur, E256); emit_x(r, oth); cur, oth = oth, cur
    a(f"""
    v_lshrrev_b32 v60, 6, v0
    v_and_b32 v61, 15, v0
    v_lshrrev_b32 v62, 1, v60
    v_lshl_add_u32 v62, v62, 4, v61
    v_and_b32 v63, 1, v60
    v_lshl_add_u32 v63, v63, 4, v61
    v_add_u32 v63, 21, v63
    s_movk_i32 s30, 272
    v_mul_lo_u32 v62, v62, s30
    v_mul_lo_u32 v63, v63, s30
    v_bfe_u32 v61, v0, 4, 2
    v_lshl_add_u32 v62, v61, 4, v62
    v_lshl_add_u32 v63, v61, 4, v63
    s_waitcnt lgkmcnt(0)
    s_barrier
    """)
    def rd(s):
        off = (s >> 2)*XY_WAVE + (s & 3)*64
        slot = s % 8
        a(f"ds_read_b128 {vr(64+4*slot,4)}, v62 offset:{off}")
        a(f"ds_read_b128 {vr(96+4*slot,4)}, v63 offset:{off}")
    for s in range(6): rd(s)
    for s in range(16):
        last = min(s+5, 15)
        a(f"s_waitcnt lgkmcnt({2*(last-s)})")
        slot = s % 8
        c = "0" if s == 0 else "v[56:59]"
        a(f"v_mfma_f32_16x16x32_bf16 v[56:59], {vr(64+4*slot,4)}, {vr(96+4*slot,4)}, {c}")
        if s+6 < 16: rd(s+6)
    a(f"""
    s_nop 7
    s_nop 1
    v_cvt_pk_bf16_f32 v56, v56, v57
    v_cvt_pk_bf16_f32 v58, v58, v59
    s_waitcnt vmcnt(0)
    ds_write_b16 v4, v56
    ds_write_b16_d16_hi v5, v56
    ds_write_b16 v6, v58
    ds_write_b16_d16_hi v7, v58
    s_waitcnt lgkmcnt(0)
    s_barrier
    ds_read_u16 v64, v8
    ds_read_u16_d16_hi v72, v9
    ds_read_u16 v65, v10
    ds_read_u16_d16_hi v73, v11
    ds_read_u16 v66, v12
    ds_read_u16_d16_hi v74, v13
    ds_read_u16 v67, v14
    ds_read_u16_d16_hi v75, v15
    s_mul_i32 s22, s3, {G_STRIDE}
    s_add_u32 s22, s22, {WS_G}
    s_add_u32 s20, s20, s22
    s_addc_u32 s21, s21, 0
    v_lshlrev_b32 v1, 4, v0
    v_mov_b32 v68, 0
    v_mov_b32 v69, 0
    v_mov_b32 v70, 0
    v_mov_b32 v71, 0
    s_waitcnt lgkmcnt(0)
    v_or_b32 v64, v64, v72
    v_or_b32 v65, v65, v73
    v_or_b32 v66, v66, v74
    v_or_b32 v67, v67, v75
    global_store_dwordx4 v1, v[64:67], s[20:21]
    v_cmp_gt_u32 vcc, 4, v0
    s_and_saveexec_b64 s[24:25], vcc
    s_cbranch_execz k1_end
    v_add_u32 v1, 4096, v1
    global_store_dwordx4 v1, v[68:71], s[20:21]
    s_endpgm
    """)
    a.label("k1_ln")
    a(f"""
    s_load_dwordx2 s[4:5], s[0:1], 0
    s_load_dwordx2 s[8:9], s[0:1], 120
    v_lshrrev_b32 v1, 6, v0
    s_nop 0
    v_readfirstlane_b32 s3, v1
    v_and_b32 v2, 3, v0
    v_bfe_u32 v3, v0, 2, 2
    v_bfe_u32 v4, v0, 4, 2
    v_lshl_add_u32 v5, v3, 3, v4
    s_movk_i32 s12, 896
    v_mul_lo_u32 v6, v5, s12
    v_lshl_add_u32 v6, v2, 4, v6
    v_lshl_add_u32 v6, v1, 6, v6
    v_add_u32 v7, 3584, v6
    s_mul_i32 s13, s2, 28672
    s_waitcnt lgkmcnt(0)
    s_add_u32 s4, s4, s13
    s_addc_u32 s5, s5, 0
    s_mov_b32 s10, 0x400000
    s_mov_b32 s11, 0x20000
    """)
    a(f"""
    v_mov_b32 v40, 0
    v_mov_b32 v41, 0
    v_mov_b32 v42, 0
    v_mov_b32 v43, 0
    v_mov_b32 v44, 0
    v_mov_b32 v45, 0
    v_mov_b32 v46, 0
    v_mov_b32 v47, 0
    s_cmp_ge_u32 s3, 2
    s_cbranch_scc1 k1_ln_skip1
    global_load_dwordx4 v[40:43], v6, s[4:5] offset:768
    global_load_dwordx4 v[44:47], v7, s[4:5] offset:768
k1_ln_skip1:
    """)
    for i in range(3):
        a(f"global_load_dwordx4 {vr(16+8*i,4)}, v6, s[4:5] offset:{256*i}")
        a(f"global_load_dwordx4 {vr(20+8*i,4)}, v7, s[4:5] offset:{256*i}")
    a(f"""
    v_and_b32 v48, 15, v0
    v_lshrrev_b32 v49, 2, v48
    v_and_b32 v50, 3, v48
    v_and_b32 v51, 1, v49
    v_lshlrev_b32 v51, 4, v51
    v_mov_b32 v52, 0x3f80
    v_lshlrev_b32 v52, v51, v52
    v_cmp_eq_u32 vcc, v50, v4
    s_nop 1
    v_cndmask_b32 v52, 0, v52, vcc
    v_cmp_gt_u32 vcc, 2, v49
    s_nop 1
    v_cndmask_b32 v8, 0, v52, vcc
    """)
    a(f"""
    v_sub_u32 v9, v52, v8
    v_mov_b32 v10, 0
    v_mov_b32 v11, 0
    v_mov_b32 v12, v8
    v_mov_b32 v13, v9
    s_mov_b32 s14, 0x3f803f80
    s_mov_b32 s15, 0xffff0000
    v_mov_b32 v48, 0
    v_mov_b32 v49, 0
    v_mov_b32 v50, 0
    v_mov_b32 v51, 0
    """)
    a(f"""
    v_lshlrev_b32 v14, 11, v1
    v_lshl_add_u32 v14, v4, 8, v14
    v_lshrrev_b32 v15, 1, v2
    v_lshl_add_u32 v14, v15, 7, v14
    v_lshl_add_u32 v14, v3, 5, v14
    v_and_b32 v15, 1, v2
    v_lshl_add_u32 v14, v15, 4, v14
    """)
    for i in range(4):
        if i < 3: a(f"s_waitcnt vmcnt({2*(2-i)})")
        for T in range(2):
            for k in range(4):
                r = 16+8*i+4*T+k
                a(f"v_dot2c_f32_bf16 v{48+2*T}, s14, v{r}")
                a(f"v_dot2c_f32_bf16 v{49+2*T}, v{r}, v{r}")
    EOFMARK = None
    a(f"""
    s_nop 2
    v_add_f32_dpp v48, v48, v48 quad_perm:[1,0,3,2] row_mask:0xf bank_mask:0xf
    v_add_f32_dpp v49, v49, v49 quad_perm:[1,0,3,2] row_mask:0xf bank_mask:0xf
    v_add_f32_dpp v50, v50, v50 quad_perm:[1,0,3,2] row_mask:0xf bank_mask:0xf
    v_add_f32_dpp v51, v51, v51 quad_perm:[1,0,3,2] row_mask:0xf bank_mask:0xf
    s_nop 0
    v_add_f32_dpp v48, v48, v48 quad_perm:[2,3,0,1] row_mask:0xf bank_mask:0xf
    v_add_f32_dpp v49, v49, v49 quad_perm:[2,3,0,1] row_mask:0xf bank_mask:0xf
    v_add_f32_dpp v50, v50, v50 quad_perm:[2,3,0,1] row_mask:0xf bank_mask:0xf
    v_add_f32_dpp v51, v51, v51 quad_perm:[2,3,0,1] row_mask:0xf bank_mask:0xf
    v_lshlrev_b32 v52, 3, v5
    v_lshl_add_u32 v53, v1, 8, v52
    ds_write_b64 v53, v[48:49]
    ds_write_b64 v53, v[50:51] offset:32
    s_waitcnt lgkmcnt(0)
    s_barrier
    ds_read_b64 v[54:55], v52
    ds_read_b64 v[56:57], v52 offset:256
    ds_read_b64 v[58:59], v52 offset:512
    ds_read_b64 v[60:61], v52 offset:768
    ds_read_b64 v[62:63], v52 offset:32
    ds_read_b64 v[64:65], v52 offset:288
    ds_read_b64 v[66:67], v52 offset:544
    ds_read_b64 v[68:69], v52 offset:800
    s_waitcnt lgkmcnt(0)
    v_pk_add_f32 v[54:55], v[54:55], v[56:57]
    v_pk_add_f32 v[58:59], v[58:59], v[60:61]
    v_pk_add_f32 v[62:63], v[62:63], v[64:65]
    v_pk_add_f32 v[66:67], v[66:67], v[68:69]
    v_pk_add_f32 v[48:49], v[54:55], v[58:59]
    v_pk_add_f32 v[50:51], v[62:63], v[66:67]
    """)
    inv = flit(1.0/448.0)
    for T in range(2):
        S, Q = 48+2*T, 49+2*T
        M, R = 54+4*T, 56+4*T
        a(f"""
        v_mul_f32 v{S}, {inv}, v{S}
        v_mul_f32 v{Q}, {inv}, v{Q}
        v_fma_f32 v{Q}, -v{S}, v{S}, v{Q}
        v_max_f32 v{Q}, 0, v{Q}
        v_cvt_pk_bf16_f32 v{S}, v{S}, v{Q}
        v_lshlrev_b32 v{M}, 16, v{S}
        v_and_b32 v{Q}, s15, v{S}
        v_add_f32 v{Q}, {flit(1e-5)}, v{Q}
        v_cvt_pk_bf16_f32 v{Q}, v{Q}, v{Q}
        v_and_b32 v{Q}, s15, v{Q}
        v_sqrt_f32 v{Q}, v{Q}
        s_nop 0
        v_cvt_pk_bf16_f32 v{Q}, v{Q}, v{Q}
        v_and_b32 v{Q}, s15, v{Q}
        v_rcp_f32 v{R}, v{Q}
        v_xor_b32 v{M}, 0x80000000, v{M}
        """)
    a(f"""
    s_add_u32 s16, s13, {WS_UT}
    s_add_u32 s17, s13, {WS_XT}
    """)
    for i in range(4):
        if i == 3:
            a("s_cmp_ge_u32 s3, 2"); a("s_cbranch_scc1 k1_end")
        U = 72
        for T in range(2):
            M, R = 54+4*T, 56+4*T
            for k in range(4):
                x = 16+8*i+4*T+k
                t = 64 + 2*(k % 2)
                a(f"v_lshlrev_b32 v{t}, 16, v{x}")
                a(f"v_and_b32 v{t+1}, s15, v{x}")
                a(f"v_pk_add_f32 {vr(t,2)}, {vr(t,2)}, {vr(M,2)} op_sel_hi:[1,0]")
                a(f"v_cvt_pk_bf16_f32 v{t}, v{t}, v{t+1}")
                a(f"v_and_b32 v{t+1}, s15, v{t}")
                a(f"v_lshlrev_b32 v{t}, 16, v{t}")
                a(f"v_pk_mul_f32 {vr(t,2)}, {vr(t,2)}, {vr(R,2)} op_sel_hi:[1,0]")
                a(f"v_cvt_pk_bf16_f32 v{U+4*T+k}, v{t}, v{t+1}")
        for s in range(2):
            for T in range(2):
                a(f"v_mfma_f32_16x16x32_bf16 {vr(96+8*s+4*T,4)}, {vr(8+2*s,4)}, {vr(16+8*i+4*T,4)}, 0")
        for s in range(2):
            for T in range(2):
                a(f"v_mfma_f32_16x16x32_bf16 {vr(80+8*s+4*T,4)}, {vr(8+2*s,4)}, {vr(U+4*T,4)}, 0")
        a("s_nop 4")
        for (base, soff) in ((96, "s17"), (80, "s16")):
            for s in range(2):
                D = base + 8*s
                O = 112 + 4*s + (8 if base == 80 else 0)
                a(f"v_cvt_pk_bf16_f32 v{O}, v{D}, v{D+1}")
                a(f"v_cvt_pk_bf16_f32 v{O+1}, v{D+2}, v{D+3}")
                a(f"v_cvt_pk_bf16_f32 v{O+2}, v{D+4}, v{D+5}")
                a(f"v_cvt_pk_bf16_f32 v{O+3}, v{D+6}, v{D+7}")
                a(f"buffer_store_dwordx4 {vr(O,4)}, v14, s[8:11], {soff} offen offset:{1024*s}")
            if base == 96: a("s_nop 0")
        a("s_add_u32 s16, s16, 8192"); a("s_add_u32 s17, s17, 8192")
    a.label("k1_end")
    a("s_endpgm")
    t1, t2 = tables()
    a.lines.append(".p2align 6")
    a.lines.append(".type k1_tab1,@object")
    a.lines.append("k1_tab1:")
    for i in range(0, len(t1), 8): a.lines.append("    .long " + ", ".join(str(x) for x in t1[i:i+8]))
    for i in range(0, len(t2), 8): a.lines.append("    .long " + ", ".join(str(x) for x in t2[i:i+8]))
    a.lines.append(".size k1_tab1, %d" % (4*(len(t1)+len(t2))))
    return a.text()
```

```python
from common import *
from k1 import flit

LB = 128
GC = 4160
CH_STRIDE = 37888
UOFF = 33280
XB = LB + 2*CH_STRIDE
K2_LDS = XB + 16384

def gen_k2(mimic=True):
    a = Asm()
    a(kernel_header("k2_kernel"))
    a(f"""
    s_cmp_ge_u32 s2, 252
    s_cbranch_scc1 k2_end
    s_cmp_ge_u32 s2, 224
    s_cbranch_scc1 k2_cs
    s_load_dwordx2 s[4:5], s[0:1], 120
    s_load_dwordx2 s[6:7], s[0:1], 64
    v_lshrrev_b32 v1, 6, v0
    v_and_b32 v2, 63, v0
    v_readfirstlane_b32 s3, v1
    s_lshr_b32 s8, s2, 4
    s_lshl_b32 s8, s8, 5
    s_and_b32 s9, s2, 1
    s_lshl_b32 s9, s9, 4
    s_add_u32 s8, s8, s9
    s_bfe_u32 s9, s2, 0x30001
    s_add_u32 s8, s8, s9
    s_lshr_b32 s10, s3, 1
    s_and_b32 s11, s3, 1
    s_lshl_b32 s9, s10, 3
    s_add_u32 s8, s8, s9
    s_lshl_b32 s12, s2, 7
    s_mul_i32 s13, s8, {G_STRIDE}
    s_lshl_b32 s14, s11, 11
    s_add_u32 s13, s13, s14
    s_add_u32 s13, s13, {WS_G}
    s_lshr_b32 s15, s8, 1
    s_lshl_b32 s15, s15, 2
    s_mul_i32 s16, s10, {CH_STRIDE}
    s_add_u32 s16, s16, {LB}
    s_waitcnt lgkmcnt(0)
    s_load_dword s17, s[6:7], s15
    s_add_u32 s20, s4, s13
    s_addc_u32 s21, s5, 0
    v_lshlrev_b32 v3, 4, v2
    """)
    a(f"""
    global_load_dwordx4 v[16:19], v3, s[20:21]
    global_load_dwordx4 v[20:23], v3, s[20:21] offset:16
    global_load_dwordx4 v[24:27], v3, s[20:21] offset:1024
    global_load_dwordx4 v[28:31], v3, s[20:21] offset:1040
    """)
    a(f"""
    v_lshrrev_b32 v4, 3, v0
    s_movk_i32 s18, 28672
    v_mul_lo_u32 v5, v4, s18
    v_and_b32 v6, 7, v0
    v_lshl_add_u32 v5, v6, 4, v5
    s_add_u32 s22, s4, s12
    s_addc_u32 s23, s5, 0
    s_add_u32 s24, s22, {WS_UT + 32*28672}
    s_addc_u32 s25, s23, 0
    s_add_u32 s26, s22, {WS_XT}
    s_addc_u32 s27, s23, 0
    global_load_dwordx4 v[32:35], v5, s[22:23]
    global_load_dwordx4 v[36:39], v5, s[24:25]
    """)
    assert WS_UT == 0
    a(f"""
    v_and_b32 v7, 15, v2
    v_lshrrev_b32 v8, 4, v2
    v_lshrrev_b32 v9, 1, v7
    s_lshl_b32 s19, s11, 5
    v_add_u32 v9, s19, v9
    v_mul_lo_u32 v9, v9, s18
    v_and_b32 v10, 1, v7
    v_lshl_add_u32 v9, v10, 6, v9
    v_lshrrev_b32 v10, 1, v8
    v_lshl_add_u32 v9, v10, 5, v9
    v_and_b32 v10, 1, v8
    v_lshl_add_u32 v9, v10, 3, v9
    s_lshl_b32 s19, s10, 4
    v_add_u32 v9, s19, v9
    """)
    for k in range(4):
        a(f"global_load_dwordx2 {vr(40+2*k,2)}, v9, s[26:27]")
        if k < 3: a(f"v_add_u32 v9, {8*28672}, v9")
    a(f"""
    s_lshl_b32 s19, s11, 11
    s_add_u32 s19, s19, s16
    v_add_u32 v11, s19, v3
    v_and_b32 v12, 1, v0
    s_mov_b32 s28, {CH_STRIDE}
    v_mul_lo_u32 v12, v12, s28
    v_lshl_add_u32 v12, v4, 6, v12
    v_bfe_u32 v13, v0, 1, 2
    v_lshl_add_u32 v12, v13, 4, v12
    v_add_u32 v12, {LB+UOFF+480}, v12
    """)
    a(f"""
    v_mov_b32 v48, 0
    v_mov_b32 v49, 0
    v_mov_b32 v50, 0
    v_mov_b32 v51, 0
    v_lshrrev_b32 v13, 5, v2
    v_mul_lo_u32 v13, v13, s28
    v_and_b32 v14, 31, v2
    v_lshl_add_u32 v13, v14, 4, v13
    v_add_u32 v13, {LB+UOFF}, v13
    v_cmp_gt_u32 vcc, 30, v14
    s_cmp_lg_u32 s3, 0
    s_cbranch_scc1 k2_nopad
    s_and_saveexec_b64 s[30:31], vcc
    ds_write_b128 v13, v[48:51]
    s_mov_b64 exec, s[30:31]
k2_nopad:
    s_movk_i32 s29, {GC}
    v_mul_lo_u32 v13, v2, s29
    s_add_u32 s19, s16, 4096
    v_add_u32 v13, s19, v13
    v_cmp_gt_u32 vcc, 8, v2
    s_cmp_eq_u32 s11, 0
    s_cbranch_scc1 k2_nopad2
    s_and_saveexec_b64 s[30:31], vcc
    ds_write_b128 v13, v[48:51]
    s_mov_b64 exec, s[30:31]
k2_nopad2:
    """)
    for r in range(96, 128): a(f"v_mov_b32 v{r}, 0")
    a(f"""
    v_and_b32 v52, 7, v7
    v_sub_u32 v52, 7, v52
    v_mul_lo_u32 v14, v52, s29
    v_lshrrev_b32 v52, 3, v7
    v_sub_u32 v52, v8, v52
    v_add_u32 v52, 253, v52
    v_lshl_add_u32 v14, v52, 4, v14
    s_lshl_b32 s19, s11, 8
    s_sub_u32 s30, s16, s19
    s_sub_u32 s31, s30, 3584
    v_add_u32 v14, s31, v14
    v_lshlrev_b32 v15, 5, v7
    v_lshl_add_u32 v15, v8, 4, v15
    s_add_u32 s31, s30, {UOFF+448}
    v_add_u32 v15, s31, v15
    """)
    for i in range(2):
        D = 16 + 8*i
        E, E2, D2 = 56, 62, 68
        if i == 0: a("s_waitcnt vmcnt(8)")
        else: a("s_waitcnt vmcnt(6)")
        for k in range(6): a(f"v_alignbit_b32 v{E+k}, v{D+k+1}, v{D+k}, 16")
        for k in range(6): a(f"v_alignbit_b32 v{E2+k}, v{D+k+2}, v{D+k+1}, 16")
        for k in range(6): a(f"v_mov_b32 v{D2+k}, v{D+k+1}")
        src = {0: D, 1: E, 2: D2, 3: E2, 4: D+2, 5: E+2, 6: D2+2, 7: E2+2}
        for s in range(8):
            a(f"ds_write_b128 v11, {vr(src[s],4)} offset:{s*GC + i*1024}")
        if i == 0: a("s_nop 1")
    a(f"""
    s_waitcnt vmcnt(4)
    ds_write_b128 v12, v[32:35]
    ds_write_b128 v12, v[36:39] offset:2048
    s_waitcnt lgkmcnt(0)
    s_barrier
    """)
    A0, B0, ACC = 128, 160, 96
    def rdA(t): a(f"ds_read_b128 {vr(A0+4*t,4)}, v14 offset:{512*(7-t)}")
    def rdB(t): a(f"ds_read_b128 {vr(B0+4*t,4)}, v15 offset:{512*t}")
    for t in range(7, -1, -1): rdA(t); rdB(t)
    a("s_mov_b32 s19, 4")
    a.label("k2_loop")
    a("v_subrev_u32 v14, 64, v14"); a("v_subrev_u32 v15, 64, v15")
    def mf(c, tau):
        a(f"v_mfma_f32_16x16x32_bf16 {vr(ACC+4*c,4)}, {vr(A0+4*tau,4)}, {vr(B0+4*(c-tau),4)}, {vr(ACC+4*c,4)}")
    for (tau, wait) in ((3, 6), (4, None), (2, 4), (5, None), (1, 2), (6, None), (0, 0), (7, None)):
        if wait is not None: a(f"s_waitcnt lgkmcnt({wait})")
        mf(7, tau)
    rdA(7); rdB(7)
    for c in range(6, -1, -1):
        for tau in range(c+1): mf(c, tau)
        rdA(c); rdB(c)
    a(f"""
    s_sub_u32 s19, s19, 1
    s_cmp_lg_u32 s19, 0
    s_cbranch_scc1 k2_loop
    """)
    a(f"""
    s_lshl_b32 s19, s3, 12
    s_add_u32 s19, s19, {XB}
    v_add_u32 v52, s19, v3
    s_xor_b32 s19, s3, 1
    s_lshl_b32 s19, s19, 12
    s_add_u32 s19, s19, {XB}
    v_add_u32 v53, s19, v3
    v_lshlrev_b32 v54, 5, v7
    v_lshl_add_u32 v54, v8, 3, v54
    s_lshl_b32 s19, s11, 11
    s_add_u32 s30, s16, s19
    s_add_u32 s30, s30, {UOFF+480}
    v_add_u32 v55, s30, v54
    s_lshl_b32 s30, s8, 12
    s_add_u32 s30, s30, s19
    s_add_u32 s30, s30, {WS_HT}
    s_add_u32 s20, s4, s30
    s_addc_u32 s21, s5, 0
    s_waitcnt lgkmcnt(0)
    s_cmp_eq_u32 s11, 0
    s_cbranch_scc0 k2_x1
    """)
    assert XB % 8192 == 0 or True
    F = 128
    def xch(send, keep):
        for k in range(4): a(f"ds_write_b128 v52, {vr(ACC+4*(send+k),4)} offset:{1024*k}")
        a("s_waitcnt lgkmcnt(0)"); a("s_barrier")
        for k in range(4): a(f"ds_read_b128 {vr(144+4*k,4)}, v53 offset:{1024*k}")
        for k in range(4):
            a(f"s_waitcnt lgkmcnt({3-k})")
            a(f"v_pk_add_f32 {vr(F+4*k,2)}, {vr(ACC+4*(keep+k),2)}, {vr(144+4*k,2)}")
            a(f"v_pk_add_f32 {vr(F+4*k+2,2)}, {vr(ACC+4*(keep+k)+2,2)}, {vr(146+4*k,2)}")
    xch(4, 0)
    a("s_branch k2_x2")
    a.label("k2_x1")
    xch(0, 4)
    a.label("k2_x2")
    a(f"""
    s_lshl_b32 s24, s17, 16
    s_and_b32 s25, s17, 0xffff0000
    s_bitcmp1_b32 s8, 0
    s_cselect_b32 s24, s25, s24
    s_mov_b32 s25, s24
    s_mov_b32 s15, 0xffff0000
    """)
    for k in range(4): a(f"ds_read_b64 {vr(160+2*k,2)}, v55 offset:{512*k}")
    a("s_waitcnt vmcnt(0) lgkmcnt(0)")
    def unpack(dst, src):
        a(f"v_lshlrev_b32 v{dst}, 16, v{src}"); a(f"v_and_b32 v{dst+1}, s15, v{src}")
        a(f"v_lshlrev_b32 v{dst+2}, 16, v{src+1}"); a(f"v_and_b32 v{dst+3}, s15, v{src+1}")
    def pack(dst, src):
        a(f"v_cvt_pk_bf16_f32 v{dst}, v{src}, v{src+1}"); a(f"v_cvt_pk_bf16_f32 v{dst+1}, v{src+2}, v{src+3}")
    for k in range(4):
        Fk = F+4*k; U, X, T, P = 56, 60, 64, 68
        unpack(U, 160+2*k)
        if mimic:
            pack(P, Fk); unpack(Fk, P)
            a(f"v_pk_mul_f32 {vr(U,2)}, {vr(U,2)}, s[24:25]"); a(f"v_pk_mul_f32 {vr(U+2,2)}, {vr(U+2,2)}, s[24:25]")
            pack(P, U); unpack(U, P)
            a(f"v_pk_add_f32 {vr(Fk,2)}, {vr(Fk,2)}, {vr(U,2)}"); a(f"v_pk_add_f32 {vr(Fk+2,2)}, {vr(Fk+2,2)}, {vr(U+2,2)}")
            pack(P, Fk); unpack(Fk, P)
        else:
            a(f"v_pk_fma_f32 {vr(Fk,2)}, {vr(U,2)}, s[24:25], {vr(Fk,2)}"); a(f"v_pk_fma_f32 {vr(Fk+2,2)}, {vr(U+2,2)}, s[24:25], {vr(Fk+2,2)}")
        unpack(X, 40+2*k)
        a(f"v_pk_add_f32 {vr(Fk,2)}, {vr(Fk,2)}, {vr(X,2)}"); a(f"v_pk_add_f32 {vr(Fk+2,2)}, {vr(Fk+2,2)}, {vr(X+2,2)}")
        pack(72+2*k, Fk)
        a(f"global_store_dwordx2 v54, {vr(72+2*k,2)}, s[20:21] offset:{512*k}")
    a("s_endpgm")
    a.label("k2_cs")
    a(f"""
    s_load_dwordx4 s[4:7], s[0:1], 80
    s_load_dwordx2 s[8:9], s[0:1], 120
    s_sub_u32 s3, s2, 224
    s_cmp_ge_u32 s3, 14
    s_cselect_b32 s10, 14, 0
    s_sub_u32 s11, s3, s10
    v_lshrrev_b32 v1, 4, v0
    s_movk_i32 s12, 3584
    v_mul_lo_u32 v2, v1, s12
    v_and_b32 v3, 15, v0
    v_lshl_add_u32 v2, v3, 4, v2
    s_lshl_b32 s13, s11, 8
    v_add_u32 v2, s13, v2
    s_waitcnt lgkmcnt(0)
    s_cmp_ge_u32 s3, 14
    s_cselect_b32 s4, s6, s4
    s_cselect_b32 s5, s7, s5
    s_movk_i32 s14, 0x3f80
    s_mov_b32 s15, 0x3f800000
    """)
    for r in range(8): a(f"v_mov_b32 v{8+r}, 0")
    a("s_mov_b32 s16, 4")
    a.label("k2_cs_loop")
    for i in range(7):
        a(f"global_load_dwordx4 {vr(16+4*i,4)}, v2, s[4:5]")
        a(f"v_add_u32 v2, {16*3584}, v2")
    for i in range(7):
        a(f"s_waitcnt vmcnt({6-i})")
        for k in range(4):
            a(f"v_dot2c_f32_bf16 v{8+2*k}, s14, v{16+4*i+k}")
            a(f"v_dot2c_f32_bf16 v{9+2*k}, s15, v{16+4*i+k}")
    a(f"""
    s_sub_u32 s16, s16, 1
    s_cmp_lg_u32 s16, 0
    s_cbranch_scc1 k2_cs_loop
    v_lshlrev_b32 v4, 9, v1
    v_lshl_add_u32 v4, v3, 5, v4
    s_nop 1
    ds_write_b128 v4, v[8:11]
    ds_write_b128 v4, v[12:15] offset:16
    s_waitcnt lgkmcnt(0)
    s_barrier
    v_cmp_gt_u32 vcc, 128, v0
    s_and_saveexec_b64 s[18:19], vcc
    s_cbranch_execz k2_end
    v_lshlrev_b32 v4, 2, v0
    """)
    for i in range(16): a(f"ds_read_b32 v{16+i}, v4 offset:{512*i}")
    a("s_waitcnt lgkmcnt(0)")
    for i in range(1, 16): a(f"v_add_f32 v16, v16, v{16+i}")
    a(f"""
    s_lshl_b32 s13, s3, 9
    s_add_u32 s13, s13, {WS_CS}
    s_add_u32 s8, s8, s13
    s_addc_u32 s9, s9, 0
    global_store_dword v4, v16, s[8:9]
    """)
    a.label("k2_end")
    a("s_endpgm")
    return a.text()
```

```python
from common import *
from k1 import flit

K3_LDS = 163840
RING = 114688
NV = 256
ACC, HF, WF0, WF1 = 128, 32, 64, 80
VH, VWR, VT, CSR = 8, 16, 18, 96

def gen_k3():
    a = Asm()
    a(kernel_header("k3_kernel"))
    a(f"""
    s_cmp_ge_u32 s2, 224
    s_cbranch_scc1 k3_end
    s_load_dwordx4 s[4:7], s[0:1], 80
    s_load_dwordx2 s[8:9], s[0:1], 120
    v_lshrrev_b32 v1, 6, v0
    v_and_b32 v2, 63, v0
    v_readfirstlane_b32 s3, v1
    s_and_b32 s10, s2, 7
    s_lshr_b32 s11, s2, 3
    s_lshr_b32 s12, s10, 1
    s_lshl_b32 s12, s12, 2
    s_and_b32 s13, s11, 3
    s_add_u32 s12, s12, s13
    s_and_b32 s13, s10, 1
    s_mul_i32 s13, s13, 7
    s_lshr_b32 s14, s11, 2
    s_add_u32 s13, s13, s14
    """)
    a(f"""
    v_lshrrev_b32 v3, 4, v2
    v_and_b32 v4, 15, v2
    v_lshrrev_b32 v5, 1, v4
    v_and_b32 v6, 1, v2
    s_lshl_b32 s14, s3, 15
    s_lshl_b32 s15, s12, 8
    s_add_u32 s14, s14, s15
    v_lshlrev_b32 v7, 12, v3
    v_lshl_add_u32 v7, v6, 4, v7
    v_add_u32 v7, s14, v7
    v_xor_b32 v20, v5, v3
    v_lshl_add_u32 v20, v20, 5, v7
    v_or_b32 v21, 4, v3
    v_xor_b32 v21, v5, v21
    v_lshl_add_u32 v21, v21, 5, v7
    v_add_u32 v21, {4*4096-1024}, v21
    """)
    a(f"""
    v_lshrrev_b32 v7, 2, v2
    s_movk_i32 s14, 3584
    v_mul_lo_u32 v22, v7, s14
    v_bfe_u32 v24, v2, 1, 1
    v_and_b32 v25, 1, v3
    v_xor_b32 v24, v24, v25
    v_lshl_add_u32 v22, v24, 5, v22
    v_lshl_add_u32 v22, v6, 4, v22
    s_lshl_b32 s14, s13, 8
    s_lshl_b32 s15, s3, 6
    s_add_u32 s14, s14, s15
    v_add_u32 v22, s14, v22
    v_add_u32 v23, {16*3584-1024}, v22
    """)
    a(f"""
    v_and_b32 v24, 7, v7
    s_lshl_b32 s14, s3, 1
    v_xor_b32 v24, s14, v24
    v_and_b32 v25, 3, v2
    v_lshlrev_b32 v26, 8, v7
    v_lshl_add_u32 v26, v25, 3, v26
    """)
    for i in range(8):
        a(f"v_xor_b32 v27, {i}, v24"); a(f"v_lshl_add_u32 v{VH+i}, v27, 5, v26")
    a(f"""
    s_mul_i32 s16, s3, 12288
    s_add_u32 s16, s16, {RING}
    v_lshlrev_b32 v26, 6, v7
    v_lshl_add_u32 v26, v25, 3, v26
    v_add_u32 v26, s16, v26
    v_and_b32 v27, 1, v3
    v_lshl_add_u32 v{VWR}, v27, 5, v26
    v_xor_b32 v27, 1, v27
    v_lshl_add_u32 v{VWR+1}, v27, 5, v26
    """)
    a(f"""
    s_waitcnt lgkmcnt(0)
    s_add_u32 s20, s8, {WS_HT}
    s_addc_u32 s21, s9, 0
    s_mov_b32 s22, {448*4096}
    s_mov_b32 s23, 0x20000
    s_mov_b32 s24, s4
    s_mov_b32 s25, s5
    s_mov_b32 s26, {448*3584}
    s_mov_b32 s27, 0x20000
    s_sub_u32 s28, s6, 2048
    s_subb_u32 s29, s7, 0
    s_mov_b32 s30, {448*3584+2048}
    s_mov_b32 s31, 0x20000
    s_add_u32 s32, s8, {WS_HP}
    s_addc_u32 s33, s9, 0
    s_mov_b32 s34, {2048*1792*2}
    s_mov_b32 s35, 0x20000
    """)
    a(f"""
    s_lshl_b32 s14, s13, 9
    s_lshl_b32 s15, s3, 7
    s_add_u32 s14, s14, s15
    s_add_u32 s14, s14, {WS_CS}
    s_add_u32 s36, s8, s14
    s_addc_u32 s37, s9, 0
    v_lshlrev_b32 v27, 4, v3
    global_load_dwordx4 v[{CSR}:{CSR+3}], v27, s[36:37]
    global_load_dwordx4 v[{CSR+4}:{CSR+7}], v27, s[36:37] offset:64
    v_add_u32 v27, 7168, v27
    global_load_dwordx4 v[{CSR+8}:{CSR+11}], v27, s[36:37]
    global_load_dwordx4 v[{CSR+12}:{CSR+15}], v27, s[36:37] offset:64
    """)
    a(f"""
    s_mov_b32 s40, 0
    s_mov_b32 s41, 0
    s_lshl_b32 s42, s3, 11
    s_mov_b32 s44, 0
    """)
    def dma_group():
        a("s_add_u32 s43, s16, s44")
        a("s_mov_b32 m0, s43")
        a("s_add_u32 s44, s44, 4096")
        a("buffer_load_dwordx4 v22, s[24:27], s41 offen lds")
        a("buffer_load_dwordx4 v23, s[24:27], s41 offen offset:1024 lds")
        a("buffer_load_dwordx4 v22, s[28:31], s41 offen offset:2048 lds")
        a("buffer_load_dwordx4 v23, s[28:31], s41 offen offset:3072 lds")
        a("s_mov_b32 m0, s42")
        a("s_cmp_eq_u32 s44, 12288")
        a("s_cselect_b32 s44, 0, s44")
        a("buffer_load_dwordx4 v20, s[20:23], s40 offen lds")
        a("buffer_load_dwordx4 v21, s[20:23], s40 offen offset:1024 lds")
        a("s_add_u32 s40, s40, 131072")
        a("s_add_u32 s41, s41, 114688")
        a("s_add_u32 s42, s42, 8192")
    for g in range(3): dma_group()
    for r in range(ACC, ACC+128): a(f"v_mov_b32 v{r}, 0")
    for r in range(24, 28): a(f"v_mov_b32 v{r}, 0")
    a("s_mov_b32 s38, 0x3f803f80")
    def rdW(S, stage_reg_ready=True):
        for t in range(4):
            for hh in range(2):
                a(f"ds_read_b64_tr_b16 {vr(S+4*t+2*hh,2)}, v{VT+(t&1)} offset:{(t>>1)*2048+hh*1024}")
    def rdH(i, off):
        for hh in range(2):
            a(f"ds_read_b64_tr_b16 {vr(HF+4*i+2*hh,2)}, v{VH+i} offset:{off+hh*4096}")
    a(f"""
    s_mov_b32 s45, 0
    v_mov_b32 v{VT}, v{VWR}
    v_mov_b32 v{VT+1}, v{VWR+1}
    s_waitcnt vmcnt(12)
    s_barrier
    """)
    rdW(WF0)
    for i in range(8): rdH(i, 0)
    a("s_mov_b32 s46, 0")
    a.label("k3_loop")
    for P in range(2):
        Wc, Wn = (WF0, WF1) if P == 0 else (WF1, WF0)
        lab = f"k3_s{P}"
        a(f"""
        s_cmp_lt_u32 s46, 12
        s_cbranch_scc1 {lab}_a
        s_waitcnt vmcnt(0)
{lab}_a:
        s_waitcnt vmcnt(6)
        s_barrier
        s_add_u32 s45, s45, 4096
        s_cmp_eq_u32 s45, 12288
        s_cselect_b32 s45, 0, s45
        v_add_u32 v{VT}, s45, v{VWR}
        v_add_u32 v{VT+1}, s45, v{VWR+1}
        s_waitcnt lgkmcnt(14)
        s_cmp_gt_u32 s46, 10
        s_cbranch_scc1 {lab}_b
        """)
        dma_group()
        a.label(f"{lab}_b")
        rdW(Wn)
        for i in range(8):
            a("s_waitcnt lgkmcnt(15)" if i > 0 else "s_waitcnt lgkmcnt(15)")
            for t in range(4):
                acc = ACC + (i*4+t)*4
                a(f"v_mfma_f32_16x16x32_bf16 {vr(acc,4)}, {vr(Wc+4*t,4)}, {vr(HF+4*i,4)}, {vr(acc,4)}")
            if i < 2:
                for k in range(4):
                    a(f"v_dot2c_f32_bf16 v{24+2*i}, s38, v{HF+4*i+k}")
                    a(f"v_dot2c_f32_bf16 v{25+2*i}, v{HF+4*i+k}, v{HF+4*i+k}")
            rdH(i, 8192*(P+1))
        a("s_add_u32 s46, s46, 1")
    for i in range(8): a(f"v_add_u32 v{VH+i}, 16384, v{VH+i}")
    a(f"""
    s_cmp_lt_u32 s46, 14
    s_cbranch_scc1 k3_loop
    """)
    a("s_nop 1")
    for r in range(24, 28): a(f"v_mov_b32 v{r+4}, v{r}")
    a("s_nop 1")
    for r in range(24, 28): a(f"v_permlane16_swap_b32 v{r}, v{r+4}")
    for r in range(24, 28): a(f"v_add_f32 v{r}, v{r}, v{r+4}")
    for r in range(24, 28): a(f"v_mov_b32 v{r+4}, v{r}")
    a("s_nop 1")
    for r in range(24, 28): a(f"v_permlane32_swap_b32 v{r}, v{r+4}")
    for r in range(24, 28): a(f"v_add_f32 v{r}, v{r}, v{r+4}")
    a("s_mov_b32 s15, 0xffff0000")
    inv = flit(1.0/448.0)
    for T in range(2):
        S, Q = 24+2*T, 25+2*T
        a(f"""
        v_mul_f32 v{S}, {inv}, v{S}
        v_mul_f32 v{Q}, {inv}, v{Q}
        v_fma_f32 v{Q}, -v{S}, v{S}, v{Q}
        v_max_f32 v{Q}, 0, v{Q}
        v_cvt_pk_bf16_f32 v{S}, v{S}, v{Q}
        v_and_b32 v{Q}, s15, v{S}
        v_lshlrev_b32 v{S}, 16, v{S}
        v_add_f32 v{Q}, {flit(1e-5)}, v{Q}
        v_cvt_pk_bf16_f32 v{Q}, v{Q}, v{Q}
        v_and_b32 v{Q}, s15, v{Q}
        v_sqrt_f32 v{Q}, v{Q}
        s_nop 0
        v_cvt_pk_bf16_f32 v{Q}, v{Q}, v{Q}
        v_and_b32 v{Q}, s15, v{Q}
        v_rcp_f32 v{Q}, v{Q}
        s_nop 0
        v_mul_f32 v{Q}, v{Q}, v{Q}
        """)
    a(f"""
    v_lshlrev_b32 v28, 2, v4
    v_add_u32 v29, s16, v28
    s_waitcnt lgkmcnt(0)
    ds_write_b32 v29, v24
    ds_write_b32 v29, v26 offset:64
    s_cmp_lg_u32 s13, 0
    s_cbranch_scc1 k3_nors
    s_lshl_b32 s14, s12, 9
    s_lshl_b32 s17, s3, 7
    s_add_u32 s14, s14, s17
    s_add_u32 s14, s14, {WS_RS}
    s_add_u32 s36, s8, s14
    s_addc_u32 s37, s9, 0
    v_cmp_gt_u32 vcc, 16, v2
    s_and_saveexec_b64 s[18:19], vcc
    global_store_dword v28, v25, s[36:37]
    global_store_dword v28, v27, s[36:37] offset:64
    s_mov_b64 exec, s[18:19]
k3_nors:
    s_waitcnt lgkmcnt(0)
    s_barrier
    """)
    for aa in range(4):
        a(f"s_xor_b32 s14, s3, {aa}")
        a(f"s_mul_i32 s14, s14, 12288")
        a(f"s_add_u32 s14, s14, {RING}")
        a(f"v_add_u32 v29, s14, v28")
        a(f"ds_read_b32 v{32+2*aa}, v29")
        a(f"ds_read_b32 v{33+2*aa}, v29 offset:64")
    a(f"""
    s_mul_i32 s14, s12, {8*56}
    s_lshl_b32 s17, s13, 2
    s_add_u32 s14, s14, s17
    s_add_u32 s14, s14, s3
    s_lshl_b32 s14, s14, 10
    s_lshl_b32 s17, s3, 1
    v_lshlrev_b32 v30, 4, v2
    s_waitcnt vmcnt(0) lgkmcnt(0)
    """)
    for i in range(8):
        mreg = 32 + (i & ~1)
        sel = i & 1
        O = 40 + 4*(i % 2)
        for t in range(4):
            acc = ACC + (i*4+t)*4
            for hp in range(2):
                a(f"v_pk_fma_f32 {vr(acc+2*hp,2)}, {vr(CSR+4*t+2*hp,2)}, {vr(mreg,2)}, {vr(acc+2*hp,2)} op_sel:[0,{sel},0] op_sel_hi:[1,{sel},1] neg_lo:[0,1,0] neg_hi:[0,1,0]")
        for t in range(2):
            g = ACC + (i*4+t)*4; u = ACC + (i*4+t+2)*4
            for hp in range(2):
                a(f"v_pk_mul_f32 {vr(g+2*hp,2)}, {vr(g+2*hp,2)}, {vr(u+2*hp,2)}")
        for t in range(2):
            g = ACC + (i*4+t)*4
            a(f"v_cvt_pk_bf16_f32 v{O+2*t}, v{g}, v{g+1}")
            a(f"v_cvt_pk_bf16_f32 v{O+2*t+1}, v{g+2}, v{g+3}")
        a(f"s_xor_b32 s18, s17, {i}")
        a(f"s_mul_i32 s18, s18, 57344")
        a(f"s_add_u32 s18, s18, s14")
        a(f"buffer_store_dwordx4 {vr(O,4)}, v30, s[32:35], s18 offen")
    a.label("k3_end")
    a("s_endpgm")
    return a.text()
```

```python
from common import *
from k1 import flit

HTB = 131072
K4_LDS = HTB + 8192
NV = 160
ACC, HF, WF = 64, 32, 48

def gen_k4():
    a = Asm()
    a(kernel_header("k4_kernel"))
    a(f"""
    s_cmp_ge_u32 s2, 224
    s_cbranch_scc1 k4_end
    s_load_dwordx4 s[4:7], s[0:1], 96
    s_load_dwordx2 s[8:9], s[0:1], 120
    v_lshrrev_b32 v1, 6, v0
    v_and_b32 v2, 63, v0
    v_readfirstlane_b32 s3, v1
    s_and_b32 s10, s2, 7
    s_lshr_b32 s11, s2, 3
    s_lshl_b32 s12, s10, 2
    s_and_b32 s13, s11, 3
    s_add_u32 s12, s12, s13
    s_lshr_b32 s13, s11, 2
    """)
    a(f"""
    v_lshlrev_b32 v3, 4, v2
    """)
    for b in range(4):
        a(f"s_xor_b32 s14, s3, {b}")
        a(f"s_mul_i32 s14, s14, 57344")
        a(f"s_add_u32 s14, s14, {3072 - 1024*b}")
        a(f"v_add_u32 v{8+b}, s14, v3")
    a(f"""
    v_lshrrev_b32 v4, 3, v2
    s_movk_i32 s14, 896
    v_mul_lo_u32 v12, v4, s14
    v_bfe_u32 v5, v2, 1, 2
    v_lshrrev_b32 v6, 4, v2
    v_xor_b32 v5, v5, v6
    v_lshlrev_b32 v5, 5, v5
    v_and_b32 v7, 1, v2
    v_lshl_add_u32 v5, v7, 4, v5
    v_add_u32 v12, v12, v5
    s_lshl_b32 s14, s13, 7
    v_add_u32 v12, s14, v12
    v_add_u32 v13, 6144, v12
    v_add_u32 v14, 12288, v12
    v_add_u32 v15, 18432, v12
    """)
    a(f"""
    s_lshl_b32 s14, s13, 6
    s_lshl_b32 s15, s3, 4
    s_add_u32 s14, s14, s15
    s_lshl_b32 s14, s14, 12
    s_lshl_b32 s15, s12, 7
    s_add_u32 s14, s14, s15
    v_lshl_add_u32 v16, v4, 12, v5
    v_add_u32 v16, s14, v16
    v_add_u32 v17, {8*4096-1024}, v16
    """)
    a(f"""
    s_lshl_b32 s16, s3, 15
    v_add_u32 v18, s16, v3
    v_lshrrev_b32 v24, 2, v2
    v_lshlrev_b32 v25, 7, v24
    v_and_b32 v26, 3, v2
    v_lshl_add_u32 v25, v26, 3, v25
    v_bfe_u32 v26, v2, 3, 2
    s_add_u32 s14, s16, 4096
    v_add_u32 v27, s14, v25
    """)
    for ad in range(4):
        a(f"v_xor_b32 v28, {ad}, v26"); a(f"v_lshl_add_u32 v{20+ad}, v28, 5, v27")
    a(f"""
    v_xor_b32 v28, s3, v26
    v_lshl_add_u32 v19, v28, 5, v25
    v_add_u32 v19, {HTB}, v19
    s_waitcnt lgkmcnt(0)
    s_add_u32 s20, s8, {WS_HP-3072}
    s_addc_u32 s21, s9, 0
    s_mov_b32 s22, {2048*1792*2+3072}
    s_mov_b32 s23, 0x20000
    s_mov_b32 s24, s4
    s_mov_b32 s25, s5
    s_mov_b32 s26, {1792*896}
    s_mov_b32 s27, 0x20000
    s_add_u32 s28, s8, {WS_HT}
    s_addc_u32 s29, s9, 0
    s_mov_b32 s30, {448*4096}
    s_mov_b32 s31, 0x20000
    """)
    a(f"""
    s_lshl_b32 s14, s12, 8
    s_lshl_b32 s15, s3, 6
    s_add_u32 s14, s14, s15
    s_add_u32 s14, s14, {WS_RS}
    s_add_u32 s36, s8, s14
    s_addc_u32 s37, s9, 0
    v_and_b32 v29, 15, v2
    v_lshlrev_b32 v29, 2, v29
    global_load_dword v30, v29, s[36:37]
    s_lshl_b32 s14, s3, 11
    s_add_u32 s14, s14, {HTB}
    s_mov_b32 m0, s14
    s_nop 0
    buffer_load_dwordx4 v16, s[28:31], 0 offen lds
    buffer_load_dwordx4 v17, s[28:31], 0 offen offset:1024 lds
    """)
    a(f"""
    s_mul_i32 s40, s12, 224
    s_mul_i32 s14, s3, 14
    s_add_u32 s40, s40, s14
    s_lshl_b32 s40, s40, 10
    s_mul_i32 s41, s14, 28672
    s_mov_b32 s42, 0
    """)
    def dma_group():
        a("s_add_u32 s43, s16, s42")
        a("s_mov_b32 m0, s43")
        a("s_add_u32 s43, s43, 4096")
        for b in range(4):
            a(f"buffer_load_dwordx4 v{8+b}, s[20:23], s40 offen offset:{1024*b} lds")
        a("s_mov_b32 m0, s43")
        a("s_add_u32 s42, s42, 8192")
        for e in range(4):
            a(f"buffer_load_dwordx4 v{12+e}, s[24:27], s41 offen offset:{1024*e} lds")
        a("s_and_b32 s42, s42, 0x7fff")
        a("s_add_u32 s40, s40, 1024")
        a("s_add_u32 s41, s41, 28672")
    for g in range(3): dma_group()
    for r in range(ACC, ACC+64): a(f"v_mov_b32 v{r}, 0")
    a("s_mov_b32 s46, 0"); a("s_mov_b32 s45, 0")
    a.label("k4_loop")
    a(f"""
    s_cmp_gt_u32 s46, 10
    s_cbranch_scc1 k4_tail
    """)
    dma_group()
    a(f"""
    s_waitcnt vmcnt(24)
    s_branch k4_go
k4_tail:
    s_cmp_eq_u32 s46, 11
    s_cbranch_scc0 k4_t2
    s_waitcnt vmcnt(16)
    s_branch k4_go
k4_t2:
    s_cmp_eq_u32 s46, 12
    s_cbranch_scc0 k4_t3
    s_waitcnt vmcnt(8)
    s_branch k4_go
k4_t3:
    s_waitcnt vmcnt(0)
k4_go:
    v_add_u32 v28, s45, v18
    """)
    for ad in range(4): a(f"v_add_u32 v{128+ad}, s45, v{20+ad}")
    for b in range(4): a(f"ds_read_b128 {vr(HF+4*b,4)}, v28 offset:{1024*b}")
    for ad in range(4):
        for hh in range(2):
            a(f"ds_read_b64_tr_b16 {vr(WF+4*ad+2*hh,2)}, v{128+ad} offset:{2048*hh}")
    a("s_add_u32 s45, s45, 8192"); a("s_and_b32 s45, s45, 0x7fff")
    for ad in range(4):
        a(f"s_waitcnt lgkmcnt({2*(3-ad)})")
        for b in range(4):
            acc = ACC + (b*4+ad)*4
            a(f"v_mfma_f32_16x16x32_bf16 {vr(acc,4)}, {vr(WF+4*ad,4)}, {vr(HF+4*b,4)}, {vr(acc,4)}")
    a(f"""
    s_add_u32 s46, s46, 1
    s_cmp_lt_u32 s46, 14
    s_cbranch_scc1 k4_loop
    s_nop 7
    """)
    for b in range(1, 4):
        for ad in range(4):
            a(f"ds_write_b128 v18, {vr(ACC+(b*4+ad)*4,4)} offset:{(b*4+ad)*1024}")
    a("s_waitcnt lgkmcnt(0)"); a("s_barrier")
    for b in range(1, 4):
        a(f"s_xor_b32 s14, s3, {b}"); a(f"s_lshl_b32 s14, s14, 15"); a(f"v_add_u32 v28, s14, v3")
        for ad in range(4):
            a(f"ds_read_b128 {vr(ACC+(b*4+ad)*4,4)}, v28 offset:{(b*4+ad)*1024}")
    for ad in range(4): a(f"ds_read_b64_tr_b16 {vr(32+2*ad,2)}, v19 offset:{2048*ad}")
    a("s_mov_b32 s15, 0xffff0000")
    a(f"""
    v_and_b32 v40, 15, v2
    s_movk_i32 s14, 144
    v_mul_lo_u32 v40, v40, s14
    v_lshl_add_u32 v40, v6, 3, v40
    s_add_u32 s14, s16, 16384
    v_add_u32 v40, s14, v40
    v_mul_lo_u32 v41, v4, s14
    """)
    a.lines.pop()
    a(f"""
    s_movk_i32 s17, 144
    v_mul_lo_u32 v41, v4, s17
    v_and_b32 v42, 7, v2
    v_lshl_add_u32 v41, v42, 4, v41
    v_add_u32 v41, s14, v41
    s_waitcnt lgkmcnt(0)
    """)
    for ad in range(4):
        A = ACC + ad*4
        for b in range(1, 4):
            o = ACC + (b*4+ad)*4
            a(f"v_pk_add_f32 {vr(A,2)}, {vr(A,2)}, {vr(o,2)}"); a(f"v_pk_add_f32 {vr(A+2,2)}, {vr(A+2,2)}, {vr(o+2,2)}")
        X = 44
        a(f"v_lshlrev_b32 v{X}, 16, v{32+2*ad}"); a(f"v_and_b32 v{X+1}, s15, v{32+2*ad}")
        a(f"v_lshlrev_b32 v{X+2}, 16, v{33+2*ad}"); a(f"v_and_b32 v{X+3}, s15, v{33+2*ad}")
        a(f"v_pk_fma_f32 {vr(A,2)}, {vr(A,2)}, v[30:31], {vr(X,2)} op_sel_hi:[1,0,1]")
        a(f"v_pk_fma_f32 {vr(A+2,2)}, {vr(A+2,2)}, v[30:31], {vr(X+2,2)} op_sel_hi:[1,0,1]")
        a(f"v_cvt_pk_bf16_f32 v48, v{A}, v{A+1}"); a(f"v_cvt_pk_bf16_f32 v49, v{A+2}, v{A+3}")
        a(f"ds_write_b64 v40, v[48:49] offset:{32*ad}")
    a(f"""
    s_lshl_b32 s14, s12, 6
    s_lshl_b32 s17, s3, 4
    s_add_u32 s14, s14, s17
    s_mul_i32 s14, s14, 896
    s_lshl_b32 s17, s13, 7
    s_add_u32 s14, s14, s17
    s_add_u32 s6, s6, s14
    s_addc_u32 s7, s7, 0
    s_movk_i32 s17, 896
    v_mul_lo_u32 v43, v4, s17
    v_lshl_add_u32 v43, v42, 4, v43
    s_waitcnt lgkmcnt(0)
    ds_read_b128 v[52:55], v41
    ds_read_b128 v[56:59], v41 offset:{8*144}
    v_add_u32 v60, {8*896}, v43
    s_waitcnt lgkmcnt(1)
    global_store_dwordx4 v43, v[52:55], s[6:7]
    s_waitcnt lgkmcnt(0)
    global_store_dwordx4 v60, v[56:59], s[6:7]
    """)
    a.label("k4_end")
    a("s_endpgm")
    return a.text()
```

```python
import sys
from common import *
import k1, k2
def main(out, upto=4):
    hdr = open("sequential_preLN__ssm_conv_s4__glu_gated_bilinear__prompt.s.ref").read().split("; Override")[0]
    L = [hdr.rstrip("\n")]
    launches = [f"; @launch kernel=k1_kernel grid=(512,1,1) block=(256,1,1) lds={k1.K1_LDS}",
                f"; @launch kernel=k2_kernel grid=(252,1,1) block=(256,1,1) lds={k2.K2_LDS}"]
    body = [k1.gen_k1(), k2.gen_k2()]
    desc = [kernel_desc("k1_kernel", 128, 40), kernel_desc("k2_kernel", 192, 40)]
    if upto >= 3:
        import k3
        launches.append(f"; @launch kernel=k3_kernel grid=(224,1,1) block=(256,1,1) lds={k3.K3_LDS}")
        body.append(k3.gen_k3()); desc.append(kernel_desc("k3_kernel", k3.NV, 64))
    if upto >= 4:
        import k4
        launches.append(f"; @launch kernel=k4_kernel grid=(224,1,1) block=(256,1,1) lds={k4.K4_LDS}")
        body.append(k4.gen_k4()); desc.append(kernel_desc("k4_kernel", k4.NV, 64))
    L += launches
    L.append('.amdgcn_target "amdgcn-amd-amdhsa--gfx950"')
    L.append(".text")
    L += body
    L.append('.section .rodata,"a"')
    L.append(".p2align 6")
    L += desc
    open(out, "w").write("\n".join(L))
if __name__ == "__main__":
    main(sys.argv[1], int(sys.argv[2]) if len(sys.argv) > 2 else 4)
```

```python
STAMPS = [False]
class Asm:
    def __init__(self):
        self.lines = []
    def __call__(self, s):
        for ln in s.strip("\n").split("\n"):
            self.lines.append("    " + ln.strip() if ln.strip() and not ln.strip().endswith(":") else ln.strip())
    def label(self, name): self.lines.append(name + ":")
    def comment(self, s): self.lines.append("    ; " + s)
    def text(self): return "\n".join(self.lines) + "\n"
    def stamp(self, i):
        if STAMPS[0]: self(f"s_memrealtime s[{64+2*i}:{65+2*i}]")
    def dump(self, n, kidx, wsreg_from_kernarg=True):
        if not STAMPS[0]: return
        self(f"""
        s_memrealtime s[{64+2*n}:{65+2*n}]
        s_load_dwordx2 s[96:97], s[0:1], 120
        s_waitcnt lgkmcnt(0)
        s_lshl_b32 s98, s2, 8
        s_add_u32 s98, s98, {0x3000000 + kidx*0x40000}
        s_add_u32 s96, s96, s98
        s_addc_u32 s97, s97, 0
        s_mov_b64 exec, 1
        v_lshrrev_b32 v1, 6, v0
        v_lshlrev_b32 v1, 6, v1
        """)
        for i in range(n+1):
            self(f"v_mov_b32 v2, s{64+2*i}")
            self(f"global_store_dword v1, v2, s[96:97] offset:{4*i}")

def vr(base, n=1):
    return f"v{base}" if n == 1 else f"v[{base}:{base+n-1}]"
def sr(base, n=1):
    return f"s{base}" if n == 1 else f"s[{base}:{base+n-1}]"

WS_UT = 0x000000
WS_XT = 0x200000
WS_G  = 0x400000
WS_HT = 0x600000
WS_CS = 0x800000
WS_RS = 0x810000
WS_HP = 0x1000000
G_STRIDE = 4160

def kernel_header(name):
    return f""".globl {name}
.p2align 8
.type {name},@function
{name}:
"""
def kernel_desc(name, vgpr, sgpr, accum=None):
    if accum is None: accum = (vgpr + 3) // 4 * 4
    return f""".amdhsa_kernel {name}
  .amdhsa_next_free_vgpr {vgpr}
  .amdhsa_next_free_sgpr {sgpr}
  .amdhsa_accum_offset {accum}
  .amdhsa_group_segment_fixed_size 0
  .amdhsa_kernarg_size 128
  .amdhsa_user_sgpr_count 2
  .amdhsa_user_sgpr_kernarg_segment_ptr 1
  .amdhsa_system_sgpr_workgroup_id_x 1
.end_amdhsa_kernel
"""
```

```python
from common import *
import struct

T1ROWS = list(range(8)) + [256+2*e for e in range(4)] + [512+256*a+4*e for a in range(2) for e in range(2)] + [1024+256*a for a in range(5)]
XY_WAVE = 53*272
TAB = 4*XY_WAVE
K1_LDS = TAB + 672*2 + 64

def idx_of_t(t):
    if t < 256: return t
    if t < 512: return 256 + (t-256)//2
    if t < 1024: return 384 + (t-512)//4
    return 512 + (t-1024)//8

def bf16_rne_int(j):
    u = struct.unpack("<I", struct.pack("<f", float(j)))[0]
    u = (u + 0x7FFF + ((u >> 16) & 1)) & 0xFFFF0000
    return int(struct.unpack("<f", struct.pack("<I", u))[0])

def tables():
    t1 = []; t2 = []
    for tid in range(256):
        w, lane = tid >> 6, tid & 63
        rt, ct = w >> 1, w & 1
        col = 16*ct + (lane & 15); q = lane >> 4
        for r in range(4):
            row = 16*rt + 4*q + r
            if row <= 20: t1.append(TAB + 2*idx_of_t(T1ROWS[row] + 8*col))
            else: t1.append(TAB + 672*2 + 2*(lane & 15))
        for i in range(8):
            m = 8*tid + i
            j = 2047 - m
            t2.append(TAB + 2*idx_of_t(bf16_rne_int(j)))
    return t1, t2

def cmul(a, dst, z, rho):
    a(f"v_pk_mul_f32 {vr(dst,2)}, {vr(z,2)}, {vr(rho,2)} op_sel_hi:[1,0]")
    a(f"v_pk_fma_f32 {vr(dst,2)}, {vr(z,2)}, {vr(rho,2)}, {vr(dst,2)} op_sel:[1,1,0] op_sel_hi:[0,1,1] neg_lo:[1,0,0]")

def flit(x):
    return "0x%08x" % struct.unpack("<I", struct.pack("<f", x))[0]

def gen_k1():
    a = Asm()
    a(kernel_header("k1_kernel"))
    a(f"""
    s_cmp_ge_u32 s2, 512
    s_cbranch_scc1 k1_end
    s_cmp_lt_u32 s2, 64
    s_cbranch_scc1 k1_ln
    """)
    a.stamp(0)
    a(f"""
    s_load_dwordx16 s[4:19], s[0:1], 8
    s_load_dwordx2 s[20:21], s[0:1], 120
    s_sub_u32 s3, s2, 64
    s_getpc_b64 s[26:27]
k1_pc:
    s_add_u32 s26, s26, k1_tab1-k1_pc
    s_addc_u32 s27, s27, 0
    v_lshlrev_b32 v1, 4, v0
    v_lshlrev_b32 v2, 5, v0
    global_load_dwordx4 v[4:7], v1, s[26:27]
    s_add_u32 s28, s26, 4096
    s_addc_u32 s29, s27, 0
    global_load_dwordx4 v[8:11], v2, s[28:29]
    global_load_dwordx4 v[12:15], v2, s[28:29] offset:16
    s_lshl_b32 s22, s3, 9
    v_lshlrev_b32 v1, 1, v0
    v_add_u32 v1, s22, v1
    v_mov_b32 v16, 0
    v_mov_b32 v17, 0
    v_mov_b32 v18, 0
    v_mov_b32 v19, 0
    v_mov_b32 v20, 0
    v_mov_b32 v21, 0
    s_lshr_b32 s23, s3, 1
    s_lshl_b32 s23, s23, 2
    s_waitcnt lgkmcnt(0)
    s_load_dword s22, s[16:17], s23
    global_load_short_d16_hi v16, v1, s[4:5]
    global_load_short_d16_hi v17, v1, s[6:7]
    global_load_short_d16_hi v18, v1, s[8:9]
    global_load_short_d16_hi v19, v1, s[10:11]
    global_load_short_d16_hi v20, v1, s[12:13]
    global_load_short_d16_hi v21, v1, s[14:15]
    v_and_b32 v2, 63, v0
    v_lshrrev_b32 v3, 6, v0
    s_mov_b32 s30, {XY_WAVE}
    v_mul_lo_u32 v3, v3, s30
    v_lshl_add_u32 v3, v2, 2, v3
    s_waitcnt lgkmcnt(0)
    s_lshl_b32 s24, s22, 16
    s_and_b32 s25, s22, 0xffff0000
    s_bitcmp1_b32 s3, 0
    s_cselect_b32 s22, s25, s24
    v_mov_b32 v22, s22
    v_mul_f32 v22, {flit(1.4426950408889634)}, v22
    v_exp_f32 v22, v22
    s_nop 0
    v_cvt_pk_bf16_f32 v22, v22, v22
    v_and_b32 v22, 0xffff0000, v22
    s_waitcnt vmcnt(0)
    v_mul_f32 v23, v22, v16
    v_mul_f32 v24, v22, v17
    v_mul_f32 v23, {flit(1.4426950408889634)}, v23
    v_mul_f32 v24, {flit(0.15915494309189535)}, v24
    v_mul_f32 v18, v22, v18
    v_mul_f32 v19, v22, v19
    v_mul_f32 v26, v20, v18
    v_mul_f32 v27, v20, v19
    v_fma_f32 v26, -v21, v19, v26
    v_fma_f32 v27, v21, v18, v27
    """)
    a.stamp(1)
    W, E1, E8, E256, E2, E4 = 26, 28, 30, 32, 34, 36
    def direct(dst, T):
        if T == 1:
            a("v_mov_b32 v46, v23"); a("v_fract_f32 v48, v24")
        else:
            a(f"v_mul_f32 v46, {flit(float(T))}, v23"); a(f"v_mul_f32 v48, {flit(float(T))}, v24"); a("v_fract_f32 v48, v48")
        a(f"v_exp_f32 v46, v46")
        a(f"v_cos_f32 v{dst}, v48")
        a(f"v_sin_f32 v{dst+1}, v48")
        a("s_nop 0")
        a(f"v_pk_mul_f32 {vr(dst,2)}, {vr(dst,2)}, v[46:47] op_sel_hi:[1,0]")
    direct(E8, 8); direct(E1, 1); direct(E256, 256)
    pk = [52, 53, 54, 55]; pki = [0]
    def emit_x(row, z):
        p = pk[pki[0] % 4]; pki[0] += 1
        a(f"v_cvt_pk_bf16_f32 v{p}, v{z}, -v{z+1}")
        a(f"ds_write_b32 v3, v{p} offset:{row*272}")
    def emit_y(b, z):
        p = pk[pki[0] % 4]; pki[0] += 1
        a(f"v_cvt_pk_bf16_f32 v{p}, v{z}, v{z+1}")
        a(f"ds_write_b32 v3, v{p} offset:{(21+b)*272}")
    a("v_mov_b32 v52, 0x3f80"); a(f"ds_write_b32 v3, v52 offset:{21*272}"); pki[0] = 1
    emit_y(1, E8)
    z0, z1 = 38, 40
    cur = E8
    for b in range(2, 32):
        nxt = z0 if cur != z0 else z1
        cmul(a, nxt, cur, E8); emit_y(b, nxt); cur = nxt
    emit_x(0, W)
    cur = W
    for e in range(1, 8):
        nxt = z0 if cur != z0 else z1
        cmul(a, nxt, cur, E1); emit_x(e, nxt); cur = nxt
    cmul(a, E2, E1, E1); cmul(a, E4, E2, E2)
    P0, P1 = 42, 44
    cmul(a, P0, W, E256); emit_x(8, P0)
    cur = P0
    for e in range(1, 4):
        nxt = z0 if cur != z0 else z1
        cmul(a, nxt, cur, E2); emit_x(8+e, nxt); cur = nxt
    cmul(a, P1, P0, E256); emit_x(12, P1)
    cmul(a, z0, P1, E4); emit_x(13, z0)
    cmul(a, P0, P1, E256); emit_x(14, P0)
    cmul(a, z0, P0, E4); emit_x(15, z0)
    cur, oth = P0, P1
    for r in range(16, 21):
        cmul(a, oth, cur, E256); emit_x(r, oth); cur, oth = oth, cur
    a.stamp(2)
    a(f"""
    v_lshrrev_b32 v60, 6, v0
    v_and_b32 v61, 15, v0
    v_lshrrev_b32 v62, 1, v60
    v_lshl_add_u32 v62, v62, 4, v61
    v_and_b32 v63, 1, v60
    v_lshl_add_u32 v63, v63, 4, v61
    v_add_u32 v63, 21, v63
    s_movk_i32 s30, 272
    v_mul_lo_u32 v62, v62, s30
    v_mul_lo_u32 v63, v63, s30
    v_bfe_u32 v61, v0, 4, 2
    v_lshl_add_u32 v62, v61, 4, v62
    v_lshl_add_u32 v63, v61, 4, v63
    s_waitcnt lgkmcnt(0)
    s_barrier
    """)
    a.stamp(3)
    def rd(s):
        off = (s >> 2)*XY_WAVE + (s & 3)*64
        slot = s % 8
        a(f"ds_read_b128 {vr(64+4*slot,4)}, v62 offset:{off}")
        a(f"ds_read_b128 {vr(96+4*slot,4)}, v63 offset:{off}")
    for s in range(6): rd(s)
    for s in range(16):
        last = min(s+5, 15)
        a(f"s_waitcnt lgkmcnt({2*(last-s)})")
        slot = s % 8
        c = "0" if s == 0 else "v[56:59]"
        a(f"v_mfma_f32_16x16x32_bf16 v[56:59], {vr(64+4*slot,4)}, {vr(96+4*slot,4)}, {c}")
        if s+6 < 16: rd(s+6)
    a.stamp(4)
    a(f"""
    s_nop 7
    s_nop 1
    v_cvt_pk_bf16_f32 v56, v56, v57
    v_cvt_pk_bf16_f32 v58, v58, v59
    s_waitcnt vmcnt(0)
    ds_write_b16 v4, v56
    ds_write_b16_d16_hi v5, v56
    ds_write_b16 v6, v58
    ds_write_b16_d16_hi v7, v58
    s_waitcnt lgkmcnt(0)
    s_barrier
    ds_read_u16 v64, v8
    ds_read_u16_d16_hi v72, v9
    ds_read_u16 v65, v10
    ds_read_u16_d16_hi v73, v11
    ds_read_u16 v66, v12
    ds_read_u16_d16_hi v74, v13
    ds_read_u16 v67, v14
    ds_read_u16_d16_hi v75, v15
    s_mul_i32 s22, s3, {G_STRIDE}
    s_add_u32 s22, s22, {WS_G}
    s_add_u32 s20, s20, s22
    s_addc_u32 s21, s21, 0
    v_lshlrev_b32 v1, 4, v0
    v_mov_b32 v68, 0
    v_mov_b32 v69, 0
    v_mov_b32 v70, 0
    v_mov_b32 v71, 0
    s_waitcnt lgkmcnt(0)
    v_or_b32 v64, v64, v72
    v_or_b32 v65, v65, v73
    v_or_b32 v66, v66, v74
    v_or_b32 v67, v67, v75
    global_store_dwordx4 v1, v[64:67], s[20:21]
    v_cmp_gt_u32 vcc, 4, v0
    s_and_saveexec_b64 s[24:25], vcc
    s_cbranch_execz k1_kend
    v_add_u32 v1, 4096, v1
    global_store_dwordx4 v1, v[68:71], s[20:21]
k1_kend:
    """)
    a.dump(5, 0)
    a("s_endpgm")
    a.label("k1_ln")
    a.stamp(0)
    a(f"""
    s_load_dwordx2 s[4:5], s[0:1], 0
    s_load_dwordx2 s[8:9], s[0:1], 120
    v_lshrrev_b32 v1, 6, v0
    s_nop 0
    v_readfirstlane_b32 s3, v1
    v_and_b32 v2, 3, v0
    v_bfe_u32 v3, v0, 2, 2
    v_bfe_u32 v4, v0, 4, 2
    v_lshl_add_u32 v5, v3, 3, v4
    s_movk_i32 s12, 896
    v_mul_lo_u32 v6, v5, s12
    v_lshl_add_u32 v6, v2, 4, v6
    v_lshl_add_u32 v6, v1, 6, v6
    v_add_u32 v7, 3584, v6
    s_mul_i32 s13, s2, 28672
    s_waitcnt lgkmcnt(0)
    s_add_u32 s4, s4, s13
    s_addc_u32 s5, s5, 0
    s_mov_b32 s10, 0x400000
    s_mov_b32 s11, 0x20000
    """)
    a(f"""
    v_mov_b32 v40, 0
    v_mov_b32 v41, 0
    v_mov_b32 v42, 0
    v_mov_b32 v43, 0
    v_mov_b32 v44, 0
    v_mov_b32 v45, 0
    v_mov_b32 v46, 0
    v_mov_b32 v47, 0
    s_cmp_ge_u32 s3, 2
    s_cbranch_scc1 k1_ln_skip1
    global_load_dwordx4 v[40:43], v6, s[4:5] offset:768
    global_load_dwordx4 v[44:47], v7, s[4:5] offset:768
k1_ln_skip1:
    """)
    for i in range(3):
        a(f"global_load_dwordx4 {vr(16+8*i,4)}, v6, s[4:5] offset:{256*i}")
        a(f"global_load_dwordx4 {vr(20+8*i,4)}, v7, s[4:5] offset:{256*i}")
    a(f"""
    v_and_b32 v48, 15, v0
    v_lshrrev_b32 v49, 2, v48
    v_and_b32 v50, 3, v48
    v_and_b32 v51, 1, v49
    v_lshlrev_b32 v51, 4, v51
    v_mov_b32 v52, 0x3f80
    v_lshlrev_b32 v52, v51, v52
    v_cmp_eq_u32 vcc, v50, v4
    s_nop 1
    v_cndmask_b32 v52, 0, v52, vcc
    v_cmp_gt_u32 vcc, 2, v49
    s_nop 1
    v_cndmask_b32 v8, 0, v52, vcc
    """)
    a(f"""
    v_sub_u32 v9, v52, v8
    v_mov_b32 v10, 0
    v_mov_b32 v11, 0
    v_mov_b32 v12, v8
    v_mov_b32 v13, v9
    s_mov_b32 s14, 0x3f803f80
    s_mov_b32 s15, 0xffff0000
    v_mov_b32 v48, 0
    v_mov_b32 v49, 0
    v_mov_b32 v50, 0
    v_mov_b32 v51, 0
    """)
    a(f"""
    v_lshlrev_b32 v14, 11, v1
    v_lshl_add_u32 v14, v4, 8, v14
    v_lshrrev_b32 v15, 1, v2
    v_lshl_add_u32 v14, v15, 7, v14
    v_lshl_add_u32 v14, v3, 5, v14
    v_and_b32 v15, 1, v2
    v_lshl_add_u32 v14, v15, 4, v14
    """)
    for i in range(4):
        if i < 3: a(f"s_waitcnt vmcnt({2*(2-i)})")
        for T in range(2):
            for k in range(4):
                r = 16+8*i+4*T+k
                a(f"v_dot2c_f32_bf16 v{48+2*T}, s14, v{r}")
                a(f"v_dot2c_f32_bf16 v{49+2*T}, v{r}, v{r}")
    a.stamp(1)
    a(f"""
    s_nop 2
    v_add_f32_dpp v48, v48, v48 quad_perm:[1,0,3,2] row_mask:0xf bank_mask:0xf
    v_add_f32_dpp v49, v49, v49 quad_perm:[1,0,3,2] row_mask:0xf bank_mask:0xf
    v_add_f32_dpp v50, v50, v50 quad_perm:[1,0,3,2] row_mask:0xf bank_mask:0xf
    v_add_f32_dpp v51, v51, v51 quad_perm:[1,0,3,2] row_mask:0xf bank_mask:0xf
    s_nop 0
    v_add_f32_dpp v48, v48, v48 quad_perm:[2,3,0,1] row_mask:0xf bank_mask:0xf
    v_add_f32_dpp v49, v49, v49 quad_perm:[2,3,0,1] row_mask:0xf bank_mask:0xf
    v_add_f32_dpp v50, v50, v50 quad_perm:[2,3,0,1] row_mask:0xf bank_mask:0xf
    v_add_f32_dpp v51, v51, v51 quad_perm:[2,3,0,1] row_mask:0xf bank_mask:0xf
    v_lshlrev_b32 v52, 3, v5
    v_lshl_add_u32 v53, v1, 8, v52
    ds_write_b64 v53, v[48:49]
    ds_write_b64 v53, v[50:51] offset:32
    s_waitcnt lgkmcnt(0)
    s_barrier
    ds_read_b64 v[54:55], v52
    ds_read_b64 v[56:57], v52 offset:256
    ds_read_b64 v[58:59], v52 offset:512
    ds_read_b64 v[60:61], v52 offset:768
    ds_read_b64 v[62:63], v52 offset:32
    ds_read_b64 v[64:65], v52 offset:288
    ds_read_b64 v[66:67], v52 offset:544
    ds_read_b64 v[68:69], v52 offset:800
    s_waitcnt lgkmcnt(0)
    v_pk_add_f32 v[54:55], v[54:55], v[56:57]
    v_pk_add_f32 v[58:59], v[58:59], v[60:61]
    v_pk_add_f32 v[62:63], v[62:63], v[64:65]
    v_pk_add_f32 v[66:67], v[66:67], v[68:69]
    v_pk_add_f32 v[48:49], v[54:55], v[58:59]
    v_pk_add_f32 v[50:51], v[62:63], v[66:67]
    """)
    inv = flit(1.0/448.0)
    for T in range(2):
        S, Q = 48+2*T, 49+2*T
        M, R = 54+4*T, 56+4*T
        a(f"""
        v_mul_f32 v{S}, {inv}, v{S}
        v_mul_f32 v{Q}, {inv}, v{Q}
        v_fma_f32 v{Q}, -v{S}, v{S}, v{Q}
        v_max_f32 v{Q}, 0, v{Q}
        v_cvt_pk_bf16_f32 v{S}, v{S}, v{Q}
        v_lshlrev_b32 v{M}, 16, v{S}
        v_and_b32 v{Q}, s15, v{S}
        v_add_f32 v{Q}, {flit(1e-5)}, v{Q}
        v_cvt_pk_bf16_f32 v{Q}, v{Q}, v{Q}
        v_and_b32 v{Q}, s15, v{Q}
        v_sqrt_f32 v{Q}, v{Q}
        s_nop 0
        v_cvt_pk_bf16_f32 v{Q}, v{Q}, v{Q}
        v_and_b32 v{Q}, s15, v{Q}
        v_rcp_f32 v{R}, v{Q}
        v_xor_b32 v{M}, 0x80000000, v{M}
        """)
    a.stamp(2)
    a(f"""
    s_add_u32 s16, s13, {WS_UT}
    s_add_u32 s17, s13, {WS_XT}
    """)
    for i in range(4):
        if i == 3:
            a("s_cmp_ge_u32 s3, 2"); a("s_cbranch_scc1 k1_lend")
        U = 72
        for T in range(2):
            M, R = 54+4*T, 56+4*T
            for k in range(4):
                x = 16+8*i+4*T+k
                t = 64 + 2*(k % 2)
                a(f"v_lshlrev_b32 v{t}, 16, v{x}")
                a(f"v_and_b32 v{t+1}, s15, v{x}")
                a(f"v_pk_add_f32 {vr(t,2)}, {vr(t,2)}, {vr(M,2)} op_sel_hi:[1,0]")
                a(f"v_cvt_pk_bf16_f32 v{t}, v{t}, v{t+1}")
                a(f"v_and_b32 v{t+1}, s15, v{t}")
                a(f"v_lshlrev_b32 v{t}, 16, v{t}")
                a(f"v_pk_mul_f32 {vr(t,2)}, {vr(t,2)}, {vr(R,2)} op_sel_hi:[1,0]")
                a(f"v_cvt_pk_bf16_f32 v{U+4*T+k}, v{t}, v{t+1}")
        for s in range(2):
            for T in range(2):
                a(f"v_mfma_f32_16x16x32_bf16 {vr(96+8*s+4*T,4)}, {vr(8+2*s,4)}, {vr(16+8*i+4*T,4)}, 0")
        for s in range(2):
            for T in range(2):
                a(f"v_mfma_f32_16x16x32_bf16 {vr(80+8*s+4*T,4)}, {vr(8+2*s,4)}, {vr(U+4*T,4)}, 0")
        a("s_nop 4")
        for (base, soff) in ((96, "s17"), (80, "s16")):
            for s in range(2):
                D = base + 8*s
                O = 112 + 4*s + (8 if base == 80 else 0)
                a(f"v_cvt_pk_bf16_f32 v{O}, v{D}, v{D+1}")
                a(f"v_cvt_pk_bf16_f32 v{O+1}, v{D+2}, v{D+3}")
                a(f"v_cvt_pk_bf16_f32 v{O+2}, v{D+4}, v{D+5}")
                a(f"v_cvt_pk_bf16_f32 v{O+3}, v{D+6}, v{D+7}")
                a(f"buffer_store_dwordx4 {vr(O,4)}, v14, s[8:11], {soff} offen offset:{1024*s}")
            if base == 96: a("s_nop 0")
        a("s_add_u32 s16, s16, 8192"); a("s_add_u32 s17, s17, 8192")
    a.label("k1_lend")
    a.dump(3, 0)
    a.label("k1_end")
    a("s_endpgm")
    t1, t2 = tables()
    a.lines.append(".p2align 6")
    a.lines.append(".type k1_tab1,@object")
    a.lines.append("k1_tab1:")
    for i in range(0, len(t1), 8): a.lines.append("    .long " + ", ".join(str(x) for x in t1[i:i+8]))
    for i in range(0, len(t2), 8): a.lines.append("    .long " + ", ".join(str(x) for x in t2[i:i+8]))
    a.lines.append(".size k1_tab1, %d" % (4*(len(t1)+len(t2))))
    return a.text()
```

```python
from common import *
from k1 import flit

LB = 128
GC = 4160
CH_STRIDE = 37888
UOFF = 33280
XB = LB + 2*CH_STRIDE
K2_LDS = XB + 16384

def gen_k2(mimic=True):
    a = Asm()
    a(kernel_header("k2_kernel"))
    a(f"""
    s_cmp_ge_u32 s2, 252
    s_cbranch_scc1 k2_end
    s_cmp_ge_u32 s2, 224
    s_cbranch_scc1 k2_cs
    s_load_dwordx2 s[4:5], s[0:1], 120
    s_load_dwordx2 s[6:7], s[0:1], 64
    v_lshrrev_b32 v1, 6, v0
    v_and_b32 v2, 63, v0
    v_readfirstlane_b32 s3, v1
    s_lshr_b32 s8, s2, 4
    s_lshl_b32 s8, s8, 5
    s_and_b32 s9, s2, 1
    s_lshl_b32 s9, s9, 4
    s_add_u32 s8, s8, s9
    s_bfe_u32 s9, s2, 0x30001
    s_add_u32 s8, s8, s9
    s_lshr_b32 s10, s3, 1
    s_and_b32 s11, s3, 1
    s_lshl_b32 s9, s10, 3
    s_add_u32 s8, s8, s9
    s_lshl_b32 s12, s2, 7
    s_mul_i32 s13, s8, {G_STRIDE}
    s_lshl_b32 s14, s11, 11
    s_add_u32 s13, s13, s14
    s_add_u32 s13, s13, {WS_G}
    s_lshr_b32 s15, s8, 1
    s_lshl_b32 s15, s15, 2
    s_mul_i32 s16, s10, {CH_STRIDE}
    s_add_u32 s16, s16, {LB}
    s_waitcnt lgkmcnt(0)
    s_load_dword s17, s[6:7], s15
    s_add_u32 s20, s4, s13
    s_addc_u32 s21, s5, 0
    v_lshlrev_b32 v3, 4, v2
    """)
    a.stamp(0)
    a(f"""
    global_load_dwordx4 v[16:19], v3, s[20:21]
    global_load_dwordx4 v[20:23], v3, s[20:21] offset:16
    global_load_dwordx4 v[24:27], v3, s[20:21] offset:1024
    global_load_dwordx4 v[28:31], v3, s[20:21] offset:1040
    """)
    a(f"""
    v_lshrrev_b32 v4, 3, v0
    s_movk_i32 s18, 28672
    v_mul_lo_u32 v5, v4, s18
    v_and_b32 v6, 7, v0
    v_lshl_add_u32 v5, v6, 4, v5
    s_add_u32 s22, s4, s12
    s_addc_u32 s23, s5, 0
    s_add_u32 s24, s22, {WS_UT + 32*28672}
    s_addc_u32 s25, s23, 0
    s_add_u32 s26, s22, {WS_XT}
    s_addc_u32 s27, s23, 0
    global_load_dwordx4 v[32:35], v5, s[22:23]
    global_load_dwordx4 v[36:39], v5, s[24:25]
    """)
    assert WS_UT == 0
    a(f"""
    v_and_b32 v7, 15, v2
    v_lshrrev_b32 v8, 4, v2
    v_lshrrev_b32 v9, 1, v7
    s_lshl_b32 s19, s11, 5
    v_add_u32 v9, s19, v9
    v_mul_lo_u32 v9, v9, s18
    v_and_b32 v10, 1, v7
    v_lshl_add_u32 v9, v10, 6, v9
    v_lshrrev_b32 v10, 1, v8
    v_lshl_add_u32 v9, v10, 5, v9
    v_and_b32 v10, 1, v8
    v_lshl_add_u32 v9, v10, 3, v9
    s_lshl_b32 s19, s10, 4
    v_add_u32 v9, s19, v9
    """)
    for k in range(4):
        a(f"global_load_dwordx2 {vr(40+2*k,2)}, v9, s[26:27]")
        if k < 3: a(f"v_add_u32 v9, {8*28672}, v9")
    a(f"""
    s_lshl_b32 s19, s11, 11
    s_add_u32 s19, s19, s16
    v_add_u32 v11, s19, v3
    v_and_b32 v12, 1, v0
    s_mov_b32 s28, {CH_STRIDE}
    v_mul_lo_u32 v12, v12, s28
    v_lshl_add_u32 v12, v4, 6, v12
    v_bfe_u32 v13, v0, 1, 2
    v_lshl_add_u32 v12, v13, 4, v12
    v_add_u32 v12, {LB+UOFF+480}, v12
    """)
    a(f"""
    v_mov_b32 v48, 0
    v_mov_b32 v49, 0
    v_mov_b32 v50, 0
    v_mov_b32 v51, 0
    v_lshrrev_b32 v13, 5, v2
    v_mul_lo_u32 v13, v13, s28
    v_and_b32 v14, 31, v2
    v_lshl_add_u32 v13, v14, 4, v13
    v_add_u32 v13, {LB+UOFF}, v13
    v_cmp_gt_u32 vcc, 30, v14
    s_cmp_lg_u32 s3, 0
    s_cbranch_scc1 k2_nopad
    s_and_saveexec_b64 s[30:31], vcc
    ds_write_b128 v13, v[48:51]
    s_mov_b64 exec, s[30:31]
k2_nopad:
    s_movk_i32 s29, {GC}
    v_mul_lo_u32 v13, v2, s29
    s_add_u32 s19, s16, 4096
    v_add_u32 v13, s19, v13
    v_cmp_gt_u32 vcc, 8, v2
    s_cmp_eq_u32 s11, 0
    s_cbranch_scc1 k2_nopad2
    s_and_saveexec_b64 s[30:31], vcc
    ds_write_b128 v13, v[48:51]
    s_mov_b64 exec, s[30:31]
k2_nopad2:
    """)
    for r in range(96, 128): a(f"v_mov_b32 v{r}, 0")
    a(f"""
    v_and_b32 v52, 7, v7
    v_sub_u32 v52, 7, v52
    v_mul_lo_u32 v14, v52, s29
    v_lshrrev_b32 v52, 3, v7
    v_sub_u32 v52, v8, v52
    v_add_u32 v52, 253, v52
    v_lshl_add_u32 v14, v52, 4, v14
    s_lshl_b32 s19, s11, 8
    s_sub_u32 s30, s16, s19
    s_sub_u32 s31, s30, 3584
    v_add_u32 v14, s31, v14
    v_lshlrev_b32 v15, 5, v7
    v_lshl_add_u32 v15, v8, 4, v15
    s_add_u32 s31, s30, {UOFF+448}
    v_add_u32 v15, s31, v15
    """)
    a.stamp(1)
    for i in range(2):
        D = 16 + 8*i
        E, E2, D2 = 56, 62, 68
        if i == 0: a("s_waitcnt vmcnt(8)")
        else: a("s_waitcnt vmcnt(6)")
        for k in range(6): a(f"v_alignbit_b32 v{E+k}, v{D+k+1}, v{D+k}, 16")
        for k in range(6): a(f"v_alignbit_b32 v{E2+k}, v{D+k+2}, v{D+k+1}, 16")
        for k in range(6): a(f"v_mov_b32 v{D2+k}, v{D+k+1}")
        src = {0: D, 1: E, 2: D2, 3: E2, 4: D+2, 5: E+2, 6: D2+2, 7: E2+2}
        for s in range(8):
            a(f"ds_write_b128 v11, {vr(src[s],4)} offset:{s*GC + i*1024}")
        if i == 0: a("s_nop 1")
    a(f"""
    s_waitcnt vmcnt(4)
    ds_write_b128 v12, v[32:35]
    ds_write_b128 v12, v[36:39] offset:2048
    s_waitcnt lgkmcnt(0)
    s_barrier
    """)
    a.stamp(2)
    A0, B0, ACC = 128, 160, 96
    def rdA(t): a(f"ds_read_b128 {vr(A0+4*t,4)}, v14 offset:{512*(7-t)}")
    def rdB(t): a(f"ds_read_b128 {vr(B0+4*t,4)}, v15 offset:{512*t}")
    for t in range(7, -1, -1): rdA(t); rdB(t)
    a("s_mov_b32 s19, 4")
    a.label("k2_loop")
    a("v_subrev_u32 v14, 64, v14"); a("v_subrev_u32 v15, 64, v15")
    def mf(c, tau):
        a(f"v_mfma_f32_16x16x32_bf16 {vr(ACC+4*c,4)}, {vr(A0+4*tau,4)}, {vr(B0+4*(c-tau),4)}, {vr(ACC+4*c,4)}")
    for (tau, wait) in ((3, 6), (4, None), (2, 4), (5, None), (1, 2), (6, None), (0, 0), (7, None)):
        if wait is not None: a(f"s_waitcnt lgkmcnt({wait})")
        mf(7, tau)
    rdA(7); rdB(7)
    for c in range(6, -1, -1):
        for tau in range(c+1): mf(c, tau)
        rdA(c); rdB(c)
    a(f"""
    s_sub_u32 s19, s19, 1
    s_cmp_lg_u32 s19, 0
    s_cbranch_scc1 k2_loop
    """)
    a.stamp(3)
    a(f"""
    s_lshl_b32 s19, s3, 12
    s_add_u32 s19, s19, {XB}
    v_add_u32 v52, s19, v3
    s_xor_b32 s19, s3, 1
    s_lshl_b32 s19, s19, 12
    s_add_u32 s19, s19, {XB}
    v_add_u32 v53, s19, v3
    v_lshlrev_b32 v54, 5, v7
    v_lshl_add_u32 v54, v8, 3, v54
    s_lshl_b32 s19, s11, 11
    s_add_u32 s30, s16, s19
    s_add_u32 s30, s30, {UOFF+480}
    v_add_u32 v55, s30, v54
    s_lshl_b32 s30, s8, 12
    s_add_u32 s30, s30, s19
    s_add_u32 s30, s30, {WS_HT}
    s_add_u32 s20, s4, s30
    s_addc_u32 s21, s5, 0
    s_waitcnt lgkmcnt(0)
    s_cmp_eq_u32 s11, 0
    s_cbranch_scc0 k2_x1
    """)
    assert XB % 8192 == 0 or True
    F = 128
    def xch(send, keep):
        for k in range(4): a(f"ds_write_b128 v52, {vr(ACC+4*(send+k),4)} offset:{1024*k}")
        a("s_waitcnt lgkmcnt(0)"); a("s_barrier")
        for k in range(4): a(f"ds_read_b128 {vr(144+4*k,4)}, v53 offset:{1024*k}")
        for k in range(4):
            a(f"s_waitcnt lgkmcnt({3-k})")
            a(f"v_pk_add_f32 {vr(F+4*k,2)}, {vr(ACC+4*(keep+k),2)}, {vr(144+4*k,2)}")
            a(f"v_pk_add_f32 {vr(F+4*k+2,2)}, {vr(ACC+4*(keep+k)+2,2)}, {vr(146+4*k,2)}")
    xch(4, 0)
    a("s_branch k2_x2")
    a.label("k2_x1")
    xch(0, 4)
    a.label("k2_x2")
    a.stamp(4)
    a(f"""
    s_lshl_b32 s24, s17, 16
    s_and_b32 s25, s17, 0xffff0000
    s_bitcmp1_b32 s8, 0
    s_cselect_b32 s24, s25, s24
    s_mov_b32 s25, s24
    s_mov_b32 s15, 0xffff0000
    """)
    for k in range(4): a(f"ds_read_b64 {vr(160+2*k,2)}, v55 offset:{512*k}")
    a("s_waitcnt vmcnt(0) lgkmcnt(0)")
    def unpack(dst, src):
        a(f"v_lshlrev_b32 v{dst}, 16, v{src}"); a(f"v_and_b32 v{dst+1}, s15, v{src}")
        a(f"v_lshlrev_b32 v{dst+2}, 16, v{src+1}"); a(f"v_and_b32 v{dst+3}, s15, v{src+1}")
    def pack(dst, src):
        a(f"v_cvt_pk_bf16_f32 v{dst}, v{src}, v{src+1}"); a(f"v_cvt_pk_bf16_f32 v{dst+1}, v{src+2}, v{src+3}")
    for k in range(4):
        Fk = F+4*k; U, X, T, P = 56, 60, 64, 68
        unpack(U, 160+2*k)
        if mimic:
            pack(P, Fk); unpack(Fk, P)
            a(f"v_pk_mul_f32 {vr(U,2)}, {vr(U,2)}, s[24:25]"); a(f"v_pk_mul_f32 {vr(U+2,2)}, {vr(U+2,2)}, s[24:25]")
            pack(P, U); unpack(U, P)
            a(f"v_pk_add_f32 {vr(Fk,2)}, {vr(Fk,2)}, {vr(U,2)}"); a(f"v_pk_add_f32 {vr(Fk+2,2)}, {vr(Fk+2,2)}, {vr(U+2,2)}")
            pack(P, Fk); unpack(Fk, P)
        else:
            a(f"v_pk_fma_f32 {vr(Fk,2)}, {vr(U,2)}, s[24:25], {vr(Fk,2)}"); a(f"v_pk_fma_f32 {vr(Fk+2,2)}, {vr(U+2,2)}, s[24:25], {vr(Fk+2,2)}")
        unpack(X, 40+2*k)
        a(f"v_pk_add_f32 {vr(Fk,2)}, {vr(Fk,2)}, {vr(X,2)}"); a(f"v_pk_add_f32 {vr(Fk+2,2)}, {vr(Fk+2,2)}, {vr(X+2,2)}")
        pack(72+2*k, Fk)
        a(f"global_store_dwordx2 v54, {vr(72+2*k,2)}, s[20:21] offset:{512*k}")
    a.dump(5, 1)
    a("s_endpgm")
    a.label("k2_cs")
    a(f"""
    s_load_dwordx4 s[4:7], s[0:1], 80
    s_load_dwordx2 s[8:9], s[0:1], 120
    s_sub_u32 s3, s2, 224
    s_cmp_ge_u32 s3, 14
    s_cselect_b32 s10, 14, 0
    s_sub_u32 s11, s3, s10
    v_lshrrev_b32 v1, 4, v0
    s_movk_i32 s12, 3584
    v_mul_lo_u32 v2, v1, s12
    v_and_b32 v3, 15, v0
    v_lshl_add_u32 v2, v3, 4, v2
    s_lshl_b32 s13, s11, 8
    v_add_u32 v2, s13, v2
    s_waitcnt lgkmcnt(0)
    s_cmp_ge_u32 s3, 14
    s_cselect_b32 s4, s6, s4
    s_cselect_b32 s5, s7, s5
    s_movk_i32 s14, 0x3f80
    s_mov_b32 s15, 0x3f800000
    """)
    for r in range(8): a(f"v_mov_b32 v{8+r}, 0")
    a("s_mov_b32 s16, 4")
    a.label("k2_cs_loop")
    for i in range(7):
        a(f"global_load_dwordx4 {vr(16+4*i,4)}, v2, s[4:5]")
        a(f"v_add_u32 v2, {16*3584}, v2")
    for i in range(7):
        a(f"s_waitcnt vmcnt({6-i})")
        for k in range(4):
            a(f"v_dot2c_f32_bf16 v{8+2*k}, s14, v{16+4*i+k}")
            a(f"v_dot2c_f32_bf16 v{9+2*k}, s15, v{16+4*i+k}")
    a(f"""
    s_sub_u32 s16, s16, 1
    s_cmp_lg_u32 s16, 0
    s_cbranch_scc1 k2_cs_loop
    v_lshlrev_b32 v4, 9, v1
    v_lshl_add_u32 v4, v3, 5, v4
    s_nop 1
    ds_write_b128 v4, v[8:11]
    ds_write_b128 v4, v[12:15] offset:16
    s_waitcnt lgkmcnt(0)
    s_barrier
    v_cmp_gt_u32 vcc, 128, v0
    s_and_saveexec_b64 s[18:19], vcc
    s_cbranch_execz k2_end
    v_lshlrev_b32 v4, 2, v0
    """)
    for i in range(16): a(f"ds_read_b32 v{16+i}, v4 offset:{512*i}")
    a("s_waitcnt lgkmcnt(0)")
    for i in range(1, 16): a(f"v_add_f32 v16, v16, v{16+i}")
    a(f"""
    s_lshl_b32 s13, s3, 9
    s_add_u32 s13, s13, {WS_CS}
    s_add_u32 s8, s8, s13
    s_addc_u32 s9, s9, 0
    global_store_dword v4, v16, s[8:9]
    """)
    a.label("k2_end")
    a("s_endpgm")
    return a.text()
```

```python
from common import *
from k1 import flit

K3_LDS = 163840
RING = 114688
NV = 256
ACC, HF, WF0, WF1 = 128, 32, 64, 80
VH, VWR, VT, CSR = 8, 16, 18, 96

def gen_k3():
    a = Asm()
    a(kernel_header("k3_kernel"))
    a(f"""
    s_cmp_ge_u32 s2, 224
    s_cbranch_scc1 k3_end
    s_load_dwordx4 s[4:7], s[0:1], 80
    s_load_dwordx2 s[8:9], s[0:1], 120
    v_lshrrev_b32 v1, 6, v0
    v_and_b32 v2, 63, v0
    v_readfirstlane_b32 s3, v1
    s_and_b32 s10, s2, 7
    s_lshr_b32 s11, s2, 3
    s_lshr_b32 s12, s10, 1
    s_lshl_b32 s12, s12, 2
    s_and_b32 s13, s11, 3
    s_add_u32 s12, s12, s13
    s_and_b32 s13, s10, 1
    s_mul_i32 s13, s13, 7
    s_lshr_b32 s14, s11, 2
    s_add_u32 s13, s13, s14
    """)
    a.stamp(0)
    a(f"""
    v_lshrrev_b32 v3, 4, v2
    v_and_b32 v4, 15, v2
    v_lshrrev_b32 v5, 1, v4
    v_and_b32 v6, 1, v2
    s_lshl_b32 s14, s3, 15
    s_lshl_b32 s15, s12, 8
    s_add_u32 s14, s14, s15
    v_lshlrev_b32 v7, 12, v3
    v_lshl_add_u32 v7, v6, 4, v7
    v_add_u32 v7, s14, v7
    v_xor_b32 v20, v5, v3
    v_lshl_add_u32 v20, v20, 5, v7
    v_or_b32 v21, 4, v3
    v_xor_b32 v21, v5, v21
    v_lshl_add_u32 v21, v21, 5, v7
    v_add_u32 v21, {4*4096-1024}, v21
    """)
    a(f"""
    v_lshrrev_b32 v7, 2, v2
    s_movk_i32 s14, 3584
    v_mul_lo_u32 v22, v7, s14
    v_bfe_u32 v24, v2, 1, 1
    v_and_b32 v25, 1, v3
    v_xor_b32 v24, v24, v25
    v_lshl_add_u32 v22, v24, 5, v22
    v_lshl_add_u32 v22, v6, 4, v22
    s_lshl_b32 s14, s13, 8
    s_lshl_b32 s15, s3, 6
    s_add_u32 s14, s14, s15
    v_add_u32 v22, s14, v22
    v_add_u32 v23, {16*3584-1024}, v22
    """)
    a(f"""
    v_and_b32 v24, 7, v7
    s_lshl_b32 s14, s3, 1
    v_xor_b32 v24, s14, v24
    v_and_b32 v25, 3, v2
    v_lshlrev_b32 v26, 8, v7
    v_lshl_add_u32 v26, v25, 3, v26
    """)
    for i in range(8):
        a(f"v_xor_b32 v27, {i}, v24"); a(f"v_lshl_add_u32 v{VH+i}, v27, 5, v26")
    a(f"""
    s_mul_i32 s16, s3, 12288
    s_add_u32 s16, s16, {RING}
    v_lshlrev_b32 v26, 6, v7
    v_lshl_add_u32 v26, v25, 3, v26
    v_add_u32 v26, s16, v26
    v_and_b32 v27, 1, v3
    v_lshl_add_u32 v{VWR}, v27, 5, v26
    v_xor_b32 v27, 1, v27
    v_lshl_add_u32 v{VWR+1}, v27, 5, v26
    """)
    a(f"""
    s_waitcnt lgkmcnt(0)
    s_add_u32 s20, s8, {WS_HT}
    s_addc_u32 s21, s9, 0
    s_mov_b32 s22, {448*4096}
    s_mov_b32 s23, 0x20000
    s_mov_b32 s24, s4
    s_mov_b32 s25, s5
    s_mov_b32 s26, {448*3584}
    s_mov_b32 s27, 0x20000
    s_sub_u32 s28, s6, 2048
    s_subb_u32 s29, s7, 0
    s_mov_b32 s30, {448*3584+2048}
    s_mov_b32 s31, 0x20000
    s_add_u32 s32, s8, {WS_HP}
    s_addc_u32 s33, s9, 0
    s_mov_b32 s34, {2048*1792*2}
    s_mov_b32 s35, 0x20000
    """)
    a(f"""
    s_lshl_b32 s14, s13, 9
    s_lshl_b32 s15, s3, 7
    s_add_u32 s14, s14, s15
    s_add_u32 s14, s14, {WS_CS}
    s_add_u32 s36, s8, s14
    s_addc_u32 s37, s9, 0
    v_lshlrev_b32 v27, 4, v3
    global_load_dwordx4 v[{CSR}:{CSR+3}], v27, s[36:37]
    global_load_dwordx4 v[{CSR+4}:{CSR+7}], v27, s[36:37] offset:64
    v_add_u32 v27, 7168, v27
    global_load_dwordx4 v[{CSR+8}:{CSR+11}], v27, s[36:37]
    global_load_dwordx4 v[{CSR+12}:{CSR+15}], v27, s[36:37] offset:64
    """)
    a(f"""
    s_mov_b32 s40, 0
    s_mov_b32 s41, 0
    s_lshl_b32 s42, s3, 11
    s_mov_b32 s44, 0
    """)
    def dma_group():
        a("s_add_u32 s43, s16, s44")
        a("s_mov_b32 m0, s43")
        a("s_add_u32 s44, s44, 4096")
        a("buffer_load_dwordx4 v22, s[24:27], s41 offen lds")
        a("buffer_load_dwordx4 v23, s[24:27], s41 offen offset:1024 lds")
        a("buffer_load_dwordx4 v22, s[28:31], s41 offen offset:2048 lds")
        a("buffer_load_dwordx4 v23, s[28:31], s41 offen offset:3072 lds")
        a("s_mov_b32 m0, s42")
        a("s_cmp_eq_u32 s44, 12288")
        a("s_cselect_b32 s44, 0, s44")
        a("buffer_load_dwordx4 v20, s[20:23], s40 offen lds")
        a("buffer_load_dwordx4 v21, s[20:23], s40 offen offset:1024 lds")
        a("s_add_u32 s40, s40, 131072")
        a("s_add_u32 s41, s41, 114688")
        a("s_add_u32 s42, s42, 8192")
    for g in range(3): dma_group()
    for r in range(ACC, ACC+128): a(f"v_mov_b32 v{r}, 0")
    for r in range(24, 28): a(f"v_mov_b32 v{r}, 0")
    a("s_mov_b32 s38, 0x3f803f80")
    def rdW(S, stage_reg_ready=True):
        for t in range(4):
            for hh in range(2):
                a(f"ds_read_b64_tr_b16 {vr(S+4*t+2*hh,2)}, v{VT+(t&1)} offset:{(t>>1)*2048+hh*1024}")
    def rdH(i, off):
        for hh in range(2):
            a(f"ds_read_b64_tr_b16 {vr(HF+4*i+2*hh,2)}, v{VH+i} offset:{off+hh*4096}")
    a.stamp(1)
    a(f"""
    s_mov_b32 s45, 0
    v_mov_b32 v{VT}, v{VWR}
    v_mov_b32 v{VT+1}, v{VWR+1}
    s_waitcnt vmcnt(12)
    s_barrier
    """)
    rdW(WF0)
    for i in range(8): rdH(i, 0)
    a("s_mov_b32 s46, 0")
    a.stamp(2)
    a.label("k3_loop")
    for P in range(2):
        Wc, Wn = (WF0, WF1) if P == 0 else (WF1, WF0)
        lab = f"k3_s{P}"
        a(f"""
        s_cmp_lt_u32 s46, 12
        s_cbranch_scc1 {lab}_a
        s_waitcnt vmcnt(0)
{lab}_a:
        s_waitcnt vmcnt(6)
        s_barrier
        s_add_u32 s45, s45, 4096
        s_cmp_eq_u32 s45, 12288
        s_cselect_b32 s45, 0, s45
        v_add_u32 v{VT}, s45, v{VWR}
        v_add_u32 v{VT+1}, s45, v{VWR+1}
        s_waitcnt lgkmcnt(14)
        s_cmp_gt_u32 s46, 10
        s_cbranch_scc1 {lab}_b
        """)
        dma_group()
        a.label(f"{lab}_b")
        rdW(Wn)
        for i in range(8):
            a("s_waitcnt lgkmcnt(15)" if i > 0 else "s_waitcnt lgkmcnt(15)")
            for t in range(4):
                acc = ACC + (i*4+t)*4
                a(f"v_mfma_f32_16x16x32_bf16 {vr(acc,4)}, {vr(Wc+4*t,4)}, {vr(HF+4*i,4)}, {vr(acc,4)}")
            if i < 2:
                for k in range(4):
                    a(f"v_dot2c_f32_bf16 v{24+2*i}, s38, v{HF+4*i+k}")
                    a(f"v_dot2c_f32_bf16 v{25+2*i}, v{HF+4*i+k}, v{HF+4*i+k}")
            rdH(i, 8192*(P+1))
        a("s_add_u32 s46, s46, 1")
    for i in range(8): a(f"v_add_u32 v{VH+i}, 16384, v{VH+i}")
    a(f"""
    s_cmp_lt_u32 s46, 14
    s_cbranch_scc1 k3_loop
    """)
    a.stamp(3)
    a("s_nop 1")
    for r in range(24, 28): a(f"v_mov_b32 v{r+4}, v{r}")
    a("s_nop 1")
    for r in range(24, 28): a(f"v_permlane16_swap_b32 v{r}, v{r+4}")
    for r in range(24, 28): a(f"v_add_f32 v{r}, v{r}, v{r+4}")
    for r in range(24, 28): a(f"v_mov_b32 v{r+4}, v{r}")
    a("s_nop 1")
    for r in range(24, 28): a(f"v_permlane32_swap_b32 v{r}, v{r+4}")
    for r in range(24, 28): a(f"v_add_f32 v{r}, v{r}, v{r+4}")
    a("s_mov_b32 s15, 0xffff0000")
    inv = flit(1.0/448.0)
    for T in range(2):
        S, Q = 24+2*T, 25+2*T
        a(f"""
        v_mul_f32 v{S}, {inv}, v{S}
        v_mul_f32 v{Q}, {inv}, v{Q}
        v_fma_f32 v{Q}, -v{S}, v{S}, v{Q}
        v_max_f32 v{Q}, 0, v{Q}
        v_cvt_pk_bf16_f32 v{S}, v{S}, v{Q}
        v_and_b32 v{Q}, s15, v{S}
        v_lshlrev_b32 v{S}, 16, v{S}
        v_add_f32 v{Q}, {flit(1e-5)}, v{Q}
        v_cvt_pk_bf16_f32 v{Q}, v{Q}, v{Q}
        v_and_b32 v{Q}, s15, v{Q}
        v_sqrt_f32 v{Q}, v{Q}
        s_nop 0
        v_cvt_pk_bf16_f32 v{Q}, v{Q}, v{Q}
        v_and_b32 v{Q}, s15, v{Q}
        v_rcp_f32 v{Q}, v{Q}
        s_nop 0
        v_mul_f32 v{Q}, v{Q}, v{Q}
        """)
    a(f"""
    v_lshlrev_b32 v28, 2, v4
    v_add_u32 v29, s16, v28
    s_waitcnt lgkmcnt(0)
    ds_write_b32 v29, v24
    ds_write_b32 v29, v26 offset:64
    s_cmp_lg_u32 s13, 0
    s_cbranch_scc1 k3_nors
    s_lshl_b32 s14, s12, 9
    s_lshl_b32 s17, s3, 7
    s_add_u32 s14, s14, s17
    s_add_u32 s14, s14, {WS_RS}
    s_add_u32 s36, s8, s14
    s_addc_u32 s37, s9, 0
    v_cmp_gt_u32 vcc, 16, v2
    s_and_saveexec_b64 s[18:19], vcc
    global_store_dword v28, v25, s[36:37]
    global_store_dword v28, v27, s[36:37] offset:64
    s_mov_b64 exec, s[18:19]
k3_nors:
    s_waitcnt lgkmcnt(0)
    s_barrier
    """)
    for aa in range(4):
        a(f"s_xor_b32 s14, s3, {aa}")
        a(f"s_mul_i32 s14, s14, 12288")
        a(f"s_add_u32 s14, s14, {RING}")
        a(f"v_add_u32 v29, s14, v28")
        a(f"ds_read_b32 v{32+2*aa}, v29")
        a(f"ds_read_b32 v{33+2*aa}, v29 offset:64")
    a(f"""
    s_mul_i32 s14, s12, {8*56}
    s_lshl_b32 s17, s13, 2
    s_add_u32 s14, s14, s17
    s_add_u32 s14, s14, s3
    s_lshl_b32 s14, s14, 10
    s_lshl_b32 s17, s3, 1
    v_lshlrev_b32 v30, 4, v2
    s_waitcnt vmcnt(0) lgkmcnt(0)
    """)
    a.stamp(4)
    for i in range(8):
        mreg = 32 + (i & ~1)
        sel = i & 1
        O = 40 + 4*(i % 2)
        for t in range(4):
            acc = ACC + (i*4+t)*4
            for hp in range(2):
                a(f"v_pk_fma_f32 {vr(acc+2*hp,2)}, {vr(CSR+4*t+2*hp,2)}, {vr(mreg,2)}, {vr(acc+2*hp,2)} op_sel:[0,{sel},0] op_sel_hi:[1,{sel},1] neg_lo:[0,1,0] neg_hi:[0,1,0]")
        for t in range(2):
            g = ACC + (i*4+t)*4; u = ACC + (i*4+t+2)*4
            for hp in range(2):
                a(f"v_pk_mul_f32 {vr(g+2*hp,2)}, {vr(g+2*hp,2)}, {vr(u+2*hp,2)}")
        for t in range(2):
            g = ACC + (i*4+t)*4
            a(f"v_cvt_pk_bf16_f32 v{O+2*t}, v{g}, v{g+1}")
            a(f"v_cvt_pk_bf16_f32 v{O+2*t+1}, v{g+2}, v{g+3}")
        a(f"s_xor_b32 s18, s17, {i}")
        a(f"s_mul_i32 s18, s18, 57344")
        a(f"s_add_u32 s18, s18, s14")
        a(f"buffer_store_dwordx4 {vr(O,4)}, v30, s[32:35], s18 offen")
    a.dump(5, 2)
    a.label("k3_end")
    a("s_endpgm")
    return a.text()
```

```python
from common import *
from k1 import flit

HTB = 131072
K4_LDS = HTB + 8192
NV = 160
ACC, HF, WF = 64, 32, 48

def gen_k4():
    a = Asm()
    a(kernel_header("k4_kernel"))
    a(f"""
    s_cmp_ge_u32 s2, 224
    s_cbranch_scc1 k4_end
    s_load_dwordx4 s[4:7], s[0:1], 96
    s_load_dwordx2 s[8:9], s[0:1], 120
    v_lshrrev_b32 v1, 6, v0
    v_and_b32 v2, 63, v0
    v_readfirstlane_b32 s3, v1
    s_and_b32 s10, s2, 7
    s_lshr_b32 s11, s2, 3
    s_lshl_b32 s12, s10, 2
    s_and_b32 s13, s11, 3
    s_add_u32 s12, s12, s13
    s_lshr_b32 s13, s11, 2
    """)
    a.stamp(0)
    a(f"""
    v_lshlrev_b32 v3, 4, v2
    """)
    for b in range(4):
        a(f"s_xor_b32 s14, s3, {b}")
        a(f"s_mul_i32 s14, s14, 57344")
        a(f"s_add_u32 s14, s14, {3072 - 1024*b}")
        a(f"v_add_u32 v{8+b}, s14, v3")
    a(f"""
    v_lshrrev_b32 v4, 3, v2
    s_movk_i32 s14, 896
    v_mul_lo_u32 v12, v4, s14
    v_bfe_u32 v5, v2, 1, 2
    v_lshrrev_b32 v6, 4, v2
    v_xor_b32 v5, v5, v6
    v_lshlrev_b32 v5, 5, v5
    v_and_b32 v7, 1, v2
    v_lshl_add_u32 v5, v7, 4, v5
    v_add_u32 v12, v12, v5
    s_lshl_b32 s14, s13, 7
    v_add_u32 v12, s14, v12
    v_add_u32 v13, 6144, v12
    v_add_u32 v14, 12288, v12
    v_add_u32 v15, 18432, v12
    """)
    a(f"""
    s_lshl_b32 s14, s13, 6
    s_lshl_b32 s15, s3, 4
    s_add_u32 s14, s14, s15
    s_lshl_b32 s14, s14, 12
    s_lshl_b32 s15, s12, 7
    s_add_u32 s14, s14, s15
    v_lshl_add_u32 v16, v4, 12, v5
    v_add_u32 v16, s14, v16
    v_add_u32 v17, {8*4096-1024}, v16
    """)
    a(f"""
    s_lshl_b32 s16, s3, 15
    v_add_u32 v18, s16, v3
    v_lshrrev_b32 v24, 2, v2
    v_lshlrev_b32 v25, 7, v24
    v_and_b32 v26, 3, v2
    v_lshl_add_u32 v25, v26, 3, v25
    v_bfe_u32 v26, v2, 3, 2
    s_add_u32 s14, s16, 4096
    v_add_u32 v27, s14, v25
    """)
    for ad in range(4):
        a(f"v_xor_b32 v28, {ad}, v26"); a(f"v_lshl_add_u32 v{20+ad}, v28, 5, v27")
    a(f"""
    v_xor_b32 v28, s3, v26
    v_lshl_add_u32 v19, v28, 5, v25
    v_add_u32 v19, {HTB}, v19
    s_waitcnt lgkmcnt(0)
    s_add_u32 s20, s8, {WS_HP-3072}
    s_addc_u32 s21, s9, 0
    s_mov_b32 s22, {2048*1792*2+3072}
    s_mov_b32 s23, 0x20000
    s_mov_b32 s24, s4
    s_mov_b32 s25, s5
    s_mov_b32 s26, {1792*896}
    s_mov_b32 s27, 0x20000
    s_add_u32 s28, s8, {WS_HT}
    s_addc_u32 s29, s9, 0
    s_mov_b32 s30, {448*4096}
    s_mov_b32 s31, 0x20000
    """)
    a(f"""
    s_lshl_b32 s14, s12, 8
    s_lshl_b32 s15, s3, 6
    s_add_u32 s14, s14, s15
    s_add_u32 s14, s14, {WS_RS}
    s_add_u32 s36, s8, s14
    s_addc_u32 s37, s9, 0
    v_and_b32 v29, 15, v2
    v_lshlrev_b32 v29, 2, v29
    global_load_dword v30, v29, s[36:37]
    s_lshl_b32 s14, s3, 11
    s_add_u32 s14, s14, {HTB}
    s_mov_b32 m0, s14
    s_nop 0
    buffer_load_dwordx4 v16, s[28:31], 0 offen lds
    buffer_load_dwordx4 v17, s[28:31], 0 offen offset:1024 lds
    """)
    a(f"""
    s_mul_i32 s40, s12, 224
    s_mul_i32 s14, s3, 14
    s_add_u32 s40, s40, s14
    s_lshl_b32 s40, s40, 10
    s_mul_i32 s41, s14, 28672
    s_mov_b32 s42, 0
    """)
    def dma_group():
        a("s_add_u32 s43, s16, s42")
        a("s_mov_b32 m0, s43")
        a("s_add_u32 s43, s43, 4096")
        for b in range(4):
            a(f"buffer_load_dwordx4 v{8+b}, s[20:23], s40 offen offset:{1024*b} lds")
        a("s_mov_b32 m0, s43")
        a("s_add_u32 s42, s42, 8192")
        for e in range(4):
            a(f"buffer_load_dwordx4 v{12+e}, s[24:27], s41 offen offset:{1024*e} lds")
        a("s_and_b32 s42, s42, 0x7fff")
        a("s_add_u32 s40, s40, 1024")
        a("s_add_u32 s41, s41, 28672")
    for g in range(3): dma_group()
    for r in range(ACC, ACC+64): a(f"v_mov_b32 v{r}, 0")
    a("s_mov_b32 s46, 0"); a("s_mov_b32 s45, 0")
    a.stamp(1)
    a.label("k4_loop")
    a(f"""
    s_cmp_gt_u32 s46, 10
    s_cbranch_scc1 k4_tail
    """)
    dma_group()
    a(f"""
    s_waitcnt vmcnt(24)
    s_branch k4_go
k4_tail:
    s_cmp_eq_u32 s46, 11
    s_cbranch_scc0 k4_t2
    s_waitcnt vmcnt(16)
    s_branch k4_go
k4_t2:
    s_cmp_eq_u32 s46, 12
    s_cbranch_scc0 k4_t3
    s_waitcnt vmcnt(8)
    s_branch k4_go
k4_t3:
    s_waitcnt vmcnt(0)
k4_go:
    v_add_u32 v28, s45, v18
    """)
    for ad in range(4): a(f"v_add_u32 v{128+ad}, s45, v{20+ad}")
    for b in range(4): a(f"ds_read_b128 {vr(HF+4*b,4)}, v28 offset:{1024*b}")
    for ad in range(4):
        for hh in range(2):
            a(f"ds_read_b64_tr_b16 {vr(WF+4*ad+2*hh,2)}, v{128+ad} offset:{2048*hh}")
    a("s_add_u32 s45, s45, 8192"); a("s_and_b32 s45, s45, 0x7fff")
    for ad in range(4):
        a(f"s_waitcnt lgkmcnt({2*(3-ad)})")
        for b in range(4):
            acc = ACC + (b*4+ad)*4
            a(f"v_mfma_f32_16x16x32_bf16 {vr(acc,4)}, {vr(WF+4*ad,4)}, {vr(HF+4*b,4)}, {vr(acc,4)}")
    a(f"""
    s_add_u32 s46, s46, 1
    s_cmp_lt_u32 s46, 14
    s_cbranch_scc1 k4_loop
    s_nop 7
    """)
    a.stamp(2)
    for b in range(1, 4):
        for ad in range(4):
            a(f"ds_write_b128 v18, {vr(ACC+(b*4+ad)*4,4)} offset:{(b*4+ad)*1024}")
    a("s_waitcnt lgkmcnt(0)"); a("s_barrier")
    for b in range(1, 4):
        a(f"s_xor_b32 s14, s3, {b}"); a(f"s_lshl_b32 s14, s14, 15"); a(f"v_add_u32 v28, s14, v3")
        for ad in range(4):
            a(f"ds_read_b128 {vr(ACC+(b*4+ad)*4,4)}, v28 offset:{(b*4+ad)*1024}")
    for ad in range(4): a(f"ds_read_b64_tr_b16 {vr(32+2*ad,2)}, v19 offset:{2048*ad}")
    a("s_mov_b32 s15, 0xffff0000")
    a(f"""
    v_and_b32 v40, 15, v2
    s_movk_i32 s14, 144
    v_mul_lo_u32 v40, v40, s14
    v_lshl_add_u32 v40, v6, 3, v40
    s_add_u32 s14, s16, 16384
    v_add_u32 v40, s14, v40
    v_mul_lo_u32 v41, v4, s14
    """)
    a.lines.pop()
    a(f"""
    s_movk_i32 s17, 144
    v_mul_lo_u32 v41, v4, s17
    v_and_b32 v42, 7, v2
    v_lshl_add_u32 v41, v42, 4, v41
    v_add_u32 v41, s14, v41
    s_waitcnt lgkmcnt(0)
    """)
    for ad in range(4):
        A = ACC + ad*4
        for b in range(1, 4):
            o = ACC + (b*4+ad)*4
            a(f"v_pk_add_f32 {vr(A,2)}, {vr(A,2)}, {vr(o,2)}"); a(f"v_pk_add_f32 {vr(A+2,2)}, {vr(A+2,2)}, {vr(o+2,2)}")
        X = 44
        a(f"v_lshlrev_b32 v{X}, 16, v{32+2*ad}"); a(f"v_and_b32 v{X+1}, s15, v{32+2*ad}")
        a(f"v_lshlrev_b32 v{X+2}, 16, v{33+2*ad}"); a(f"v_and_b32 v{X+3}, s15, v{33+2*ad}")
        a(f"v_pk_fma_f32 {vr(A,2)}, {vr(A,2)}, v[30:31], {vr(X,2)} op_sel_hi:[1,0,1]")
        a(f"v_pk_fma_f32 {vr(A+2,2)}, {vr(A+2,2)}, v[30:31], {vr(X+2,2)} op_sel_hi:[1,0,1]")
        a(f"v_cvt_pk_bf16_f32 v48, v{A}, v{A+1}"); a(f"v_cvt_pk_bf16_f32 v49, v{A+2}, v{A+3}")
        a(f"ds_write_b64 v40, v[48:49] offset:{32*ad}")
    a.stamp(3)
    a(f"""
    s_lshl_b32 s14, s12, 6
    s_lshl_b32 s17, s3, 4
    s_add_u32 s14, s14, s17
    s_mul_i32 s14, s14, 896
    s_lshl_b32 s17, s13, 7
    s_add_u32 s14, s14, s17
    s_add_u32 s6, s6, s14
    s_addc_u32 s7, s7, 0
    s_movk_i32 s17, 896
    v_mul_lo_u32 v43, v4, s17
    v_lshl_add_u32 v43, v42, 4, v43
    s_waitcnt lgkmcnt(0)
    ds_read_b128 v[52:55], v41
    ds_read_b128 v[56:59], v41 offset:{8*144}
    v_add_u32 v60, {8*896}, v43
    s_waitcnt lgkmcnt(1)
    global_store_dwordx4 v43, v[52:55], s[6:7]
    s_waitcnt lgkmcnt(0)
    global_store_dwordx4 v60, v[56:59], s[6:7]
    """)
    a.dump(4, 3)
    a.label("k4_end")
    a("s_endpgm")
    return a.text()
```

```python
import sys
from common import *
import k1, k2
def main(out, upto=4, stamps=False):
    import common; common.STAMPS[0] = stamps
    sg = 102 if stamps else None
    hdr = open("sequential_preLN__ssm_conv_s4__glu_gated_bilinear__prompt.s.ref").read().split("; Override")[0]
    L = [hdr.rstrip("\n")]
    launches = [f"; @launch kernel=k1_kernel grid=(512,1,1) block=(256,1,1) lds={k1.K1_LDS}",
                f"; @launch kernel=k2_kernel grid=(256,1,1) block=(256,1,1) lds={k2.K2_LDS}"]
    body = [k1.gen_k1(), k2.gen_k2()]
    desc = [kernel_desc("k1_kernel", 128, sg or 40), kernel_desc("k2_kernel", 192, sg or 40)]
    if upto >= 3:
        import k3
        launches.append(f"; @launch kernel=k3_kernel grid=(224,1,1) block=(256,1,1) lds={k3.K3_LDS}")
        body.append(k3.gen_k3()); desc.append(kernel_desc("k3_kernel", k3.NV, sg or 64))
    if upto >= 4:
        import k4
        launches.append(f"; @launch kernel=k4_kernel grid=(224,1,1) block=(256,1,1) lds={k4.K4_LDS}")
        body.append(k4.gen_k4()); desc.append(kernel_desc("k4_kernel", k4.NV, sg or 64))
    L += launches
    L.append('.amdgcn_target "amdgcn-amd-amdhsa--gfx950"')
    L.append(".text")
    L += body
    L.append('.section .rodata,"a"')
    L.append(".p2align 6")
    L += desc
    open(out, "w").write("\n".join(L))
if __name__ == "__main__":
    main(sys.argv[1], int(sys.argv[2]) if len(sys.argv) > 2 else 4, len(sys.argv) > 3)
```

```python
from common import *
from k1 import flit

LB = 128
GC = 4160
CH_STRIDE = 37888
UOFF = 33280
XB = LB + 2*CH_STRIDE
K2_LDS = XB + 16384

def gen_k2(mimic=True):
    a = Asm()
    a(kernel_header("k2_kernel"))
    a(f"""
    s_cmp_ge_u32 s2, 256
    s_cbranch_scc1 k2_end
    s_cmp_ge_u32 s2, 252
    s_cbranch_scc1 k2_pf
    s_cmp_ge_u32 s2, 224
    s_cbranch_scc1 k2_cs
    s_load_dwordx2 s[4:5], s[0:1], 120
    s_load_dwordx2 s[6:7], s[0:1], 64
    v_lshrrev_b32 v1, 6, v0
    v_and_b32 v2, 63, v0
    v_readfirstlane_b32 s3, v1
    s_lshr_b32 s8, s2, 4
    s_lshl_b32 s8, s8, 5
    s_and_b32 s9, s2, 1
    s_lshl_b32 s9, s9, 4
    s_add_u32 s8, s8, s9
    s_bfe_u32 s9, s2, 0x30001
    s_add_u32 s8, s8, s9
    s_lshr_b32 s10, s3, 1
    s_and_b32 s11, s3, 1
    s_lshl_b32 s9, s10, 3
    s_add_u32 s8, s8, s9
    s_lshl_b32 s12, s2, 7
    s_mul_i32 s13, s8, {G_STRIDE}
    s_lshl_b32 s14, s11, 11
    s_add_u32 s13, s13, s14
    s_add_u32 s13, s13, {WS_G}
    s_lshr_b32 s15, s8, 1
    s_lshl_b32 s15, s15, 2
    s_mul_i32 s16, s10, {CH_STRIDE}
    s_add_u32 s16, s16, {LB}
    s_waitcnt lgkmcnt(0)
    s_load_dword s17, s[6:7], s15
    s_add_u32 s20, s4, s13
    s_addc_u32 s21, s5, 0
    v_lshlrev_b32 v3, 4, v2
    """)
    a.stamp(0)
    a(f"""
    global_load_dwordx4 v[16:19], v3, s[20:21]
    global_load_dwordx4 v[20:23], v3, s[20:21] offset:16
    global_load_dwordx4 v[24:27], v3, s[20:21] offset:1024
    global_load_dwordx4 v[28:31], v3, s[20:21] offset:1040
    """)
    a(f"""
    v_lshrrev_b32 v4, 3, v0
    s_movk_i32 s18, 28672
    v_mul_lo_u32 v5, v4, s18
    v_and_b32 v6, 7, v0
    v_lshl_add_u32 v5, v6, 4, v5
    s_add_u32 s22, s4, s12
    s_addc_u32 s23, s5, 0
    s_add_u32 s24, s22, {WS_UT + 32*28672}
    s_addc_u32 s25, s23, 0
    s_add_u32 s26, s22, {WS_XT}
    s_addc_u32 s27, s23, 0
    global_load_dwordx4 v[32:35], v5, s[22:23]
    global_load_dwordx4 v[36:39], v5, s[24:25]
    """)
    assert WS_UT == 0
    a(f"""
    v_and_b32 v7, 15, v2
    v_lshrrev_b32 v8, 4, v2
    v_lshrrev_b32 v9, 1, v7
    s_lshl_b32 s19, s11, 5
    v_add_u32 v9, s19, v9
    v_mul_lo_u32 v9, v9, s18
    v_and_b32 v10, 1, v7
    v_lshl_add_u32 v9, v10, 6, v9
    v_lshrrev_b32 v10, 1, v8
    v_lshl_add_u32 v9, v10, 5, v9
    v_and_b32 v10, 1, v8
    v_lshl_add_u32 v9, v10, 3, v9
    s_lshl_b32 s19, s10, 4
    v_add_u32 v9, s19, v9
    """)
    for k in range(4):
        a(f"global_load_dwordx2 {vr(40+2*k,2)}, v9, s[26:27]")
        if k < 3: a(f"v_add_u32 v9, {8*28672}, v9")
    a(f"""
    s_lshl_b32 s19, s11, 11
    s_add_u32 s19, s19, s16
    v_add_u32 v11, s19, v3
    v_and_b32 v12, 1, v0
    s_mov_b32 s28, {CH_STRIDE}
    v_mul_lo_u32 v12, v12, s28
    v_lshl_add_u32 v12, v4, 6, v12
    v_bfe_u32 v13, v0, 1, 2
    v_lshl_add_u32 v12, v13, 4, v12
    v_add_u32 v12, {LB+UOFF+480}, v12
    """)
    a(f"""
    v_mov_b32 v48, 0
    v_mov_b32 v49, 0
    v_mov_b32 v50, 0
    v_mov_b32 v51, 0
    v_lshrrev_b32 v13, 5, v2
    v_mul_lo_u32 v13, v13, s28
    v_and_b32 v14, 31, v2
    v_lshl_add_u32 v13, v14, 4, v13
    v_add_u32 v13, {LB+UOFF}, v13
    v_cmp_gt_u32 vcc, 30, v14
    s_cmp_lg_u32 s3, 0
    s_cbranch_scc1 k2_nopad
    s_and_saveexec_b64 s[30:31], vcc
    ds_write_b128 v13, v[48:51]
    s_mov_b64 exec, s[30:31]
k2_nopad:
    s_movk_i32 s29, {GC}
    v_mul_lo_u32 v13, v2, s29
    s_add_u32 s19, s16, 4096
    v_add_u32 v13, s19, v13
    v_cmp_gt_u32 vcc, 8, v2
    s_cmp_eq_u32 s11, 0
    s_cbranch_scc1 k2_nopad2
    s_and_saveexec_b64 s[30:31], vcc
    ds_write_b128 v13, v[48:51]
    s_mov_b64 exec, s[30:31]
k2_nopad2:
    """)
    for r in range(96, 128): a(f"v_mov_b32 v{r}, 0")
    a(f"""
    v_and_b32 v52, 7, v7
    v_sub_u32 v52, 7, v52
    v_mul_lo_u32 v14, v52, s29
    v_lshrrev_b32 v52, 3, v7
    v_sub_u32 v52, v8, v52
    v_add_u32 v52, 253, v52
    v_lshl_add_u32 v14, v52, 4, v14
    s_lshl_b32 s19, s11, 8
    s_sub_u32 s30, s16, s19
    s_sub_u32 s31, s30, 3584
    v_add_u32 v14, s31, v14
    v_lshlrev_b32 v15, 5, v7
    v_lshl_add_u32 v15, v8, 4, v15
    s_add_u32 s31, s30, {UOFF+448}
    v_add_u32 v15, s31, v15
    """)
    a.stamp(1)
    for i in range(2):
        D = 16 + 8*i
        E, E2, D2 = 56, 62, 68
        if i == 0: a("s_waitcnt vmcnt(8)")
        else: a("s_waitcnt vmcnt(6)")
        for k in range(6): a(f"v_alignbit_b32 v{E+k}, v{D+k+1}, v{D+k}, 16")
        for k in range(6): a(f"v_alignbit_b32 v{E2+k}, v{D+k+2}, v{D+k+1}, 16")
        for k in range(6): a(f"v_mov_b32 v{D2+k}, v{D+k+1}")
        src = {0: D, 1: E, 2: D2, 3: E2, 4: D+2, 5: E+2, 6: D2+2, 7: E2+2}
        for s in range(8):
            a(f"ds_write_b128 v11, {vr(src[s],4)} offset:{s*GC + i*1024}")
        if i == 0: a("s_nop 1")
    a(f"""
    s_waitcnt vmcnt(4)
    ds_write_b128 v12, v[32:35]
    ds_write_b128 v12, v[36:39] offset:2048
    s_waitcnt lgkmcnt(0)
    s_barrier
    """)
    a.stamp(2)
    A0, B0, ACC = 128, 160, 96
    def rdA(t): a(f"ds_read_b128 {vr(A0+4*t,4)}, v14 offset:{512*(7-t)}")
    def rdB(t): a(f"ds_read_b128 {vr(B0+4*t,4)}, v15 offset:{512*t}")
    for t in range(7, -1, -1): rdA(t); rdB(t)
    a("s_mov_b32 s19, 4")
    a.label("k2_loop")
    a("v_subrev_u32 v14, 64, v14"); a("v_subrev_u32 v15, 64, v15")
    def mf(c, tau):
        a(f"v_mfma_f32_16x16x32_bf16 {vr(ACC+4*c,4)}, {vr(A0+4*tau,4)}, {vr(B0+4*(c-tau),4)}, {vr(ACC+4*c,4)}")
    for (tau, wait) in ((3, 6), (4, None), (2, 4), (5, None), (1, 2), (6, None), (0, 0), (7, None)):
        if wait is not None: a(f"s_waitcnt lgkmcnt({wait})")
        mf(7, tau)
    rdA(7); rdB(7)
    for c in range(6, -1, -1):
        for tau in range(c+1): mf(c, tau)
        rdA(c); rdB(c)
    a(f"""
    s_sub_u32 s19, s19, 1
    s_cmp_lg_u32 s19, 0
    s_cbranch_scc1 k2_loop
    """)
    a.stamp(3)
    a(f"""
    s_lshl_b32 s19, s3, 12
    s_add_u32 s19, s19, {XB}
    v_add_u32 v52, s19, v3
    s_xor_b32 s19, s3, 1
    s_lshl_b32 s19, s19, 12
    s_add_u32 s19, s19, {XB}
    v_add_u32 v53, s19, v3
    v_lshlrev_b32 v54, 5, v7
    v_lshl_add_u32 v54, v8, 3, v54
    s_lshl_b32 s19, s11, 11
    s_add_u32 s30, s16, s19
    s_add_u32 s30, s30, {UOFF+480}
    v_add_u32 v55, s30, v54
    s_lshl_b32 s30, s8, 12
    s_add_u32 s30, s30, s19
    s_add_u32 s30, s30, {WS_HT}
    s_add_u32 s20, s4, s30
    s_addc_u32 s21, s5, 0
    s_waitcnt lgkmcnt(0)
    s_cmp_eq_u32 s11, 0
    s_cbranch_scc0 k2_x1
    """)
    assert XB % 8192 == 0 or True
    F = 128
    def xch(send, keep):
        for k in range(4): a(f"ds_write_b128 v52, {vr(ACC+4*(send+k),4)} offset:{1024*k}")
        a("s_waitcnt lgkmcnt(0)"); a("s_barrier")
        for k in range(4): a(f"ds_read_b128 {vr(144+4*k,4)}, v53 offset:{1024*k}")
        for k in range(4):
            a(f"s_waitcnt lgkmcnt({3-k})")
            a(f"v_pk_add_f32 {vr(F+4*k,2)}, {vr(ACC+4*(keep+k),2)}, {vr(144+4*k,2)}")
            a(f"v_pk_add_f32 {vr(F+4*k+2,2)}, {vr(ACC+4*(keep+k)+2,2)}, {vr(146+4*k,2)}")
    xch(4, 0)
    a("s_branch k2_x2")
    a.label("k2_x1")
    xch(0, 4)
    a.label("k2_x2")
    a.stamp(4)
    a(f"""
    s_lshl_b32 s24, s17, 16
    s_and_b32 s25, s17, 0xffff0000
    s_bitcmp1_b32 s8, 0
    s_cselect_b32 s24, s25, s24
    s_mov_b32 s25, s24
    s_mov_b32 s15, 0xffff0000
    """)
    for k in range(4): a(f"ds_read_b64 {vr(160+2*k,2)}, v55 offset:{512*k}")
    a("s_waitcnt vmcnt(0) lgkmcnt(0)")
    def unpack(dst, src):
        a(f"v_lshlrev_b32 v{dst}, 16, v{src}"); a(f"v_and_b32 v{dst+1}, s15, v{src}")
        a(f"v_lshlrev_b32 v{dst+2}, 16, v{src+1}"); a(f"v_and_b32 v{dst+3}, s15, v{src+1}")
    def pack(dst, src):
        a(f"v_cvt_pk_bf16_f32 v{dst}, v{src}, v{src+1}"); a(f"v_cvt_pk_bf16_f32 v{dst+1}, v{src+2}, v{src+3}")
    for k in range(4):
        Fk = F+4*k; U, X, T, P = 56, 60, 64, 68
        unpack(U, 160+2*k)
        if mimic:
            pack(P, Fk); unpack(Fk, P)
            a(f"v_pk_mul_f32 {vr(U,2)}, {vr(U,2)}, s[24:25]"); a(f"v_pk_mul_f32 {vr(U+2,2)}, {vr(U+2,2)}, s[24:25]")
            pack(P, U); unpack(U, P)
            a(f"v_pk_add_f32 {vr(Fk,2)}, {vr(Fk,2)}, {vr(U,2)}"); a(f"v_pk_add_f32 {vr(Fk+2,2)}, {vr(Fk+2,2)}, {vr(U+2,2)}")
            pack(P, Fk); unpack(Fk, P)
        else:
            a(f"v_pk_fma_f32 {vr(Fk,2)}, {vr(U,2)}, s[24:25], {vr(Fk,2)}"); a(f"v_pk_fma_f32 {vr(Fk+2,2)}, {vr(U+2,2)}, s[24:25], {vr(Fk+2,2)}")
        unpack(X, 40+2*k)
        a(f"v_pk_add_f32 {vr(Fk,2)}, {vr(Fk,2)}, {vr(X,2)}"); a(f"v_pk_add_f32 {vr(Fk+2,2)}, {vr(Fk+2,2)}, {vr(X+2,2)}")
        pack(72+2*k, Fk)
        a(f"global_store_dwordx2 v54, {vr(72+2*k,2)}, s[20:21] offset:{512*k}")
    a.dump(5, 1)
    a("s_endpgm")
    a.label("k2_cs")
    a(f"""
    s_load_dwordx4 s[4:7], s[0:1], 80
    s_load_dwordx2 s[8:9], s[0:1], 120
    s_sub_u32 s3, s2, 224
    s_cmp_ge_u32 s3, 14
    s_cselect_b32 s10, 14, 0
    s_sub_u32 s11, s3, s10
    v_lshrrev_b32 v1, 4, v0
    s_movk_i32 s12, 3584
    v_mul_lo_u32 v2, v1, s12
    v_and_b32 v3, 15, v0
    v_lshl_add_u32 v2, v3, 4, v2
    s_lshl_b32 s13, s11, 8
    v_add_u32 v2, s13, v2
    s_waitcnt lgkmcnt(0)
    s_cmp_ge_u32 s3, 14
    s_cselect_b32 s4, s6, s4
    s_cselect_b32 s5, s7, s5
    s_movk_i32 s14, 0x3f80
    s_mov_b32 s15, 0x3f800000
    """)
    for r in range(8): a(f"v_mov_b32 v{8+r}, 0")
    a("s_mov_b32 s16, 4")
    a.label("k2_cs_loop")
    for i in range(7):
        a(f"global_load_dwordx4 {vr(16+4*i,4)}, v2, s[4:5]")
        a(f"v_add_u32 v2, {16*3584}, v2")
    for i in range(7):
        a(f"s_waitcnt vmcnt({6-i})")
        for k in range(4):
            a(f"v_dot2c_f32_bf16 v{8+2*k}, s14, v{16+4*i+k}")
            a(f"v_dot2c_f32_bf16 v{9+2*k}, s15, v{16+4*i+k}")
    a(f"""
    s_sub_u32 s16, s16, 1
    s_cmp_lg_u32 s16, 0
    s_cbranch_scc1 k2_cs_loop
    v_lshlrev_b32 v4, 9, v1
    v_lshl_add_u32 v4, v3, 5, v4
    s_nop 1
    ds_write_b128 v4, v[8:11]
    ds_write_b128 v4, v[12:15] offset:16
    s_waitcnt lgkmcnt(0)
    s_barrier
    v_cmp_gt_u32 vcc, 128, v0
    s_and_saveexec_b64 s[18:19], vcc
    s_cbranch_execz k2_end
    v_lshlrev_b32 v4, 2, v0
    """)
    for i in range(16): a(f"ds_read_b32 v{16+i}, v4 offset:{512*i}")
    a("s_waitcnt lgkmcnt(0)")
    for i in range(1, 16): a(f"v_add_f32 v16, v16, v{16+i}")
    a(f"""
    s_lshl_b32 s13, s3, 9
    s_add_u32 s13, s13, {WS_CS}
    s_add_u32 s8, s8, s13
    s_addc_u32 s9, s9, 0
    global_store_dword v4, v16, s[8:9]
    """)
    a("s_endpgm")
    a.label("k2_pf")
    a(f"""
    s_load_dwordx2 s[4:5], s[0:1], 96
    s_sub_u32 s3, s2, 252
    s_lshl_b32 s3, s3, 15
    v_lshlrev_b32 v1, 7, v0
    v_add_u32 v1, s3, v1
    s_mov_b32 s6, {1792*896}
    s_mov_b32 s7, 0x20000
    s_mov_b32 s8, 0
    s_waitcnt lgkmcnt(0)
    """)
    for i in range(13):
        a(f"buffer_load_dword v{8+i}, v1, s[4:7], s8 offen")
        a("s_add_u32 s8, s8, 131072")
    a("s_waitcnt vmcnt(0)")
    a.label("k2_end")
    a("s_endpgm")
    return a.text()
```

```python
from common import *
from k1 import flit

K3_LDS = 163840
RING = 114688
NV = 256
ACC, HF, WF0, WF1 = 128, 32, 64, 80
VH, VWR, VT, CSR = 8, 16, 18, 96

def gen_k3():
    a = Asm()
    a(kernel_header("k3_kernel"))
    a(f"""
    s_cmp_ge_u32 s2, 224
    s_cbranch_scc1 k3_end
    s_load_dwordx4 s[4:7], s[0:1], 80
    s_load_dwordx2 s[8:9], s[0:1], 120
    v_lshrrev_b32 v1, 6, v0
    v_and_b32 v2, 63, v0
    v_readfirstlane_b32 s3, v1
    s_and_b32 s10, s2, 7
    s_lshr_b32 s11, s2, 3
    s_lshr_b32 s12, s10, 1
    s_lshl_b32 s12, s12, 2
    s_and_b32 s13, s11, 3
    s_add_u32 s12, s12, s13
    s_and_b32 s13, s10, 1
    s_mul_i32 s13, s13, 7
    s_lshr_b32 s14, s11, 2
    s_add_u32 s13, s13, s14
    """)
    a.stamp(0)
    a(f"""
    v_lshrrev_b32 v3, 4, v2
    v_and_b32 v4, 15, v2
    v_lshrrev_b32 v5, 1, v4
    v_and_b32 v6, 1, v2
    s_lshl_b32 s14, s3, 15
    s_lshl_b32 s15, s12, 8
    s_add_u32 s14, s14, s15
    v_lshlrev_b32 v7, 12, v3
    v_lshl_add_u32 v7, v6, 4, v7
    v_add_u32 v7, s14, v7
    v_xor_b32 v20, v5, v3
    v_lshl_add_u32 v20, v20, 5, v7
    v_or_b32 v21, 4, v3
    v_xor_b32 v21, v5, v21
    v_lshl_add_u32 v21, v21, 5, v7
    v_add_u32 v21, {4*4096-1024}, v21
    """)
    a(f"""
    s_lshl_b32 s14, s3, 3
    v_add_u32 v7, s14, v3
    s_movk_i32 s14, 3584
    v_mul_lo_u32 v7, v7, s14
    v_lshl_add_u32 v7, v6, 4, v7
    s_lshl_b32 s14, s13, 8
    v_add_u32 v7, s14, v7
    v_xor_b32 v22, v5, v3
    v_lshl_add_u32 v22, v22, 5, v7
    v_or_b32 v23, 4, v3
    v_xor_b32 v23, v5, v23
    v_lshl_add_u32 v23, v23, 5, v7
    v_add_u32 v23, {4*3584-1024}, v23
    v_lshrrev_b32 v7, 2, v2
    """)
    a(f"""
    v_and_b32 v24, 7, v7
    s_lshl_b32 s14, s3, 1
    v_xor_b32 v24, s14, v24
    v_and_b32 v25, 3, v2
    v_lshlrev_b32 v26, 8, v7
    v_lshl_add_u32 v26, v25, 3, v26
    """)
    for i in range(8):
        a(f"v_xor_b32 v27, {i}, v24"); a(f"v_lshl_add_u32 v{VH+i}, v27, 5, v26")
    a(f"""
    v_add_u32 v{VWR}, {RING}, v{VH}
    v_add_u32 v{VWR+1}, {RING}, v{VH+1}
    s_lshl_b32 s16, s3, 11
    s_add_u32 s16, s16, {RING}
    """)
    a(f"""
    s_waitcnt lgkmcnt(0)
    s_add_u32 s20, s8, {WS_HT}
    s_addc_u32 s21, s9, 0
    s_mov_b32 s22, {448*4096}
    s_mov_b32 s23, 0x20000
    s_mov_b32 s24, s4
    s_mov_b32 s25, s5
    s_mov_b32 s26, {448*3584}
    s_mov_b32 s27, 0x20000
    s_mov_b32 s28, s6
    s_mov_b32 s29, s7
    s_mov_b32 s30, {448*3584}
    s_mov_b32 s31, 0x20000
    s_add_u32 s32, s8, {WS_HP}
    s_addc_u32 s33, s9, 0
    s_mov_b32 s34, {2048*1792*2}
    s_mov_b32 s35, 0x20000
    """)
    a(f"""
    s_lshl_b32 s14, s13, 9
    s_lshl_b32 s15, s3, 7
    s_add_u32 s14, s14, s15
    s_add_u32 s14, s14, {WS_CS}
    s_add_u32 s36, s8, s14
    s_addc_u32 s37, s9, 0
    v_lshlrev_b32 v27, 4, v3
    global_load_dwordx4 v[{CSR}:{CSR+3}], v27, s[36:37]
    global_load_dwordx4 v[{CSR+4}:{CSR+7}], v27, s[36:37] offset:64
    v_add_u32 v27, 7168, v27
    global_load_dwordx4 v[{CSR+8}:{CSR+11}], v27, s[36:37]
    global_load_dwordx4 v[{CSR+12}:{CSR+15}], v27, s[36:37] offset:64
    """)
    a(f"""
    s_mov_b32 s40, 0
    s_mov_b32 s41, 0
    s_lshl_b32 s42, s3, 11
    s_mov_b32 s44, 0
    """)
    def dma_group():
        a("s_add_u32 s43, s16, s44")
        a("s_mov_b32 m0, s43")
        a("s_add_u32 s43, s43, 8192")
        a("buffer_load_dwordx4 v22, s[24:27], s41 offen lds")
        a("buffer_load_dwordx4 v23, s[24:27], s41 offen offset:1024 lds")
        a("s_mov_b32 m0, s43")
        a("s_add_u32 s44, s44, 16384")
        a("buffer_load_dwordx4 v22, s[28:31], s41 offen lds")
        a("buffer_load_dwordx4 v23, s[28:31], s41 offen offset:1024 lds")
        a("s_mov_b32 m0, s42")
        a("s_cmp_eq_u32 s44, 49152")
        a("s_cselect_b32 s44, 0, s44")
        a("buffer_load_dwordx4 v20, s[20:23], s40 offen lds")
        a("buffer_load_dwordx4 v21, s[20:23], s40 offen offset:1024 lds")
        a("s_add_u32 s40, s40, 131072")
        a("s_add_u32 s41, s41, 114688")
        a("s_add_u32 s42, s42, 8192")
    for g in range(3): dma_group()
    for r in range(ACC, ACC+128): a(f"v_mov_b32 v{r}, 0")
    for r in range(24, 28): a(f"v_mov_b32 v{r}, 0")
    a("s_mov_b32 s38, 0x3f803f80")
    def rdW(S, stage_reg_ready=True):
        for t in range(4):
            for hh in range(2):
                a(f"ds_read_b64_tr_b16 {vr(S+4*t+2*hh,2)}, v{VT+(t&1)} offset:{(t>>1)*8192+hh*4096}")
    def rdH(i, off):
        for hh in range(2):
            a(f"ds_read_b64_tr_b16 {vr(HF+4*i+2*hh,2)}, v{VH+i} offset:{off+hh*4096}")
    a.stamp(1)
    a(f"""
    s_mov_b32 s45, 0
    v_mov_b32 v{VT}, v{VWR}
    v_mov_b32 v{VT+1}, v{VWR+1}
    s_waitcnt vmcnt(12)
    s_barrier
    """)
    rdW(WF0)
    for i in range(8): rdH(i, 0)
    a("s_mov_b32 s46, 0")
    a.stamp(2)
    a.label("k3_loop")
    for P in range(2):
        Wc, Wn = (WF0, WF1) if P == 0 else (WF1, WF0)
        lab = f"k3_s{P}"
        a(f"""
        s_cmp_lt_u32 s46, 12
        s_cbranch_scc1 {lab}_a
        s_waitcnt vmcnt(0)
{lab}_a:
        s_waitcnt vmcnt(6) lgkmcnt(14)
        s_barrier
        s_add_u32 s45, s45, 16384
        s_cmp_eq_u32 s45, 49152
        s_cselect_b32 s45, 0, s45
        v_add_u32 v{VT}, s45, v{VWR}
        v_add_u32 v{VT+1}, s45, v{VWR+1}
        s_cmp_gt_u32 s46, 10
        s_cbranch_scc1 {lab}_b
        """)
        dma_group()
        a.label(f"{lab}_b")
        rdW(Wn)
        for i in range(8):
            a("s_waitcnt lgkmcnt(15)" if i > 0 else "s_waitcnt lgkmcnt(15)")
            for t in range(4):
                acc = ACC + (i*4+t)*4
                a(f"v_mfma_f32_16x16x32_bf16 {vr(acc,4)}, {vr(Wc+4*t,4)}, {vr(HF+4*i,4)}, {vr(acc,4)}")
            if i < 2:
                for k in range(4):
                    a(f"v_dot2c_f32_bf16 v{24+2*i}, s38, v{HF+4*i+k}")
                    a(f"v_dot2c_f32_bf16 v{25+2*i}, v{HF+4*i+k}, v{HF+4*i+k}")
            rdH(i, 8192*(P+1))
        a("s_add_u32 s46, s46, 1")
    for i in range(8): a(f"v_add_u32 v{VH+i}, 16384, v{VH+i}")
    a(f"""
    s_cmp_lt_u32 s46, 14
    s_cbranch_scc1 k3_loop
    """)
    a.stamp(3)
    a("s_nop 1")
    for r in range(24, 28): a(f"v_mov_b32 v{r+4}, v{r}")
    a("s_nop 1")
    for r in range(24, 28): a(f"v_permlane16_swap_b32 v{r}, v{r+4}")
    for r in range(24, 28): a(f"v_add_f32 v{r}, v{r}, v{r+4}")
    for r in range(24, 28): a(f"v_mov_b32 v{r+4}, v{r}")
    a("s_nop 1")
    for r in range(24, 28): a(f"v_permlane32_swap_b32 v{r}, v{r+4}")
    for r in range(24, 28): a(f"v_add_f32 v{r}, v{r}, v{r+4}")
    a("s_mov_b32 s15, 0xffff0000")
    inv = flit(1.0/448.0)
    for T in range(2):
        S, Q = 24+2*T, 25+2*T
        a(f"""
        v_mul_f32 v{S}, {inv}, v{S}
        v_mul_f32 v{Q}, {inv}, v{Q}
        v_fma_f32 v{Q}, -v{S}, v{S}, v{Q}
        v_max_f32 v{Q}, 0, v{Q}
        v_cvt_pk_bf16_f32 v{S}, v{S}, v{Q}
        v_and_b32 v{Q}, s15, v{S}
        v_lshlrev_b32 v{S}, 16, v{S}
        v_add_f32 v{Q}, {flit(1e-5)}, v{Q}
        v_cvt_pk_bf16_f32 v{Q}, v{Q}, v{Q}
        v_and_b32 v{Q}, s15, v{Q}
        v_sqrt_f32 v{Q}, v{Q}
        s_nop 0
        v_cvt_pk_bf16_f32 v{Q}, v{Q}, v{Q}
        v_and_b32 v{Q}, s15, v{Q}
        v_rcp_f32 v{Q}, v{Q}
        s_nop 0
        v_mul_f32 v{Q}, v{Q}, v{Q}
        """)
    a(f"""
    v_lshlrev_b32 v28, 2, v4
    s_lshl_b32 s14, s3, 7
    s_add_u32 s14, s14, {RING}
    v_add_u32 v29, s14, v28
    s_waitcnt lgkmcnt(0)
    s_barrier
    ds_write_b32 v29, v24
    ds_write_b32 v29, v26 offset:64
    s_cmp_lg_u32 s13, 0
    s_cbranch_scc1 k3_nors
    s_lshl_b32 s14, s12, 9
    s_lshl_b32 s17, s3, 7
    s_add_u32 s14, s14, s17
    s_add_u32 s14, s14, {WS_RS}
    s_add_u32 s36, s8, s14
    s_addc_u32 s37, s9, 0
    v_cmp_gt_u32 vcc, 16, v2
    s_and_saveexec_b64 s[18:19], vcc
    global_store_dword v28, v25, s[36:37]
    global_store_dword v28, v27, s[36:37] offset:64
    s_mov_b64 exec, s[18:19]
k3_nors:
    s_waitcnt lgkmcnt(0)
    s_barrier
    """)
    for aa in range(4):
        a(f"s_xor_b32 s14, s3, {aa}")
        a(f"s_lshl_b32 s14, s14, 7")
        a(f"s_add_u32 s14, s14, {RING}")
        a(f"v_add_u32 v29, s14, v28")
        a(f"ds_read_b32 v{32+2*aa}, v29")
        a(f"ds_read_b32 v{33+2*aa}, v29 offset:64")
    a(f"""
    s_mul_i32 s14, s12, {8*56}
    s_lshl_b32 s17, s13, 2
    s_add_u32 s14, s14, s17
    s_add_u32 s14, s14, s3
    s_lshl_b32 s14, s14, 10
    s_lshl_b32 s17, s3, 1
    v_lshlrev_b32 v30, 4, v2
    s_waitcnt vmcnt(0) lgkmcnt(0)
    """)
    a.stamp(4)
    for i in range(8):
        mreg = 32 + (i & ~1)
        sel = i & 1
        O = 40 + 4*(i % 2)
        for t in range(4):
            acc = ACC + (i*4+t)*4
            for hp in range(2):
                a(f"v_pk_fma_f32 {vr(acc+2*hp,2)}, {vr(CSR+4*t+2*hp,2)}, {vr(mreg,2)}, {vr(acc+2*hp,2)} op_sel:[0,{sel},0] op_sel_hi:[1,{sel},1] neg_lo:[0,1,0] neg_hi:[0,1,0]")
        for t in range(2):
            g = ACC + (i*4+t)*4; u = ACC + (i*4+t+2)*4
            for hp in range(2):
                a(f"v_pk_mul_f32 {vr(g+2*hp,2)}, {vr(g+2*hp,2)}, {vr(u+2*hp,2)}")
        for t in range(2):
            g = ACC + (i*4+t)*4
            a(f"v_cvt_pk_bf16_f32 v{O+2*t}, v{g}, v{g+1}")
            a(f"v_cvt_pk_bf16_f32 v{O+2*t+1}, v{g+2}, v{g+3}")
        a(f"s_xor_b32 s18, s17, {i}")
        a(f"s_mul_i32 s18, s18, 57344")
        a(f"s_add_u32 s18, s18, s14")
        a(f"buffer_store_dwordx4 {vr(O,4)}, v30, s[32:35], s18 offen")
    a.dump(5, 2)
    a.label("k3_end")
    a("s_endpgm")
    return a.text()
```

```python
from common import *
import struct

T1ROWS = list(range(8)) + [256+2*e for e in range(4)] + [512+256*a+4*e for a in range(2) for e in range(2)] + [1024+256*a for a in range(5)]
XY_WAVE = 53*272
TAB = 4*XY_WAVE
K1_LDS = TAB + 672*2 + 64

def idx_of_t(t):
    if t < 256: return t
    if t < 512: return 256 + (t-256)//2
    if t < 1024: return 384 + (t-512)//4
    return 512 + (t-1024)//8

def bf16_rne_int(j):
    u = struct.unpack("<I", struct.pack("<f", float(j)))[0]
    u = (u + 0x7FFF + ((u >> 16) & 1)) & 0xFFFF0000
    return int(struct.unpack("<f", struct.pack("<I", u))[0])

def tables():
    t1 = []; t2 = []
    for tid in range(256):
        w, lane = tid >> 6, tid & 63
        rt, ct = w >> 1, w & 1
        col = 16*ct + (lane & 15); q = lane >> 4
        for r in range(4):
            row = 16*rt + 4*q + r
            if row <= 20: t1.append(TAB + 2*idx_of_t(T1ROWS[row] + 8*col))
            else: t1.append(TAB + 672*2 + 2*(lane & 15))
        for i in range(8):
            m = 8*tid + i
            j = 2047 - m
            t2.append(TAB + 2*idx_of_t(bf16_rne_int(j)))
    return t1, t2

def cmul(a, dst, z, rho):
    a(f"v_pk_mul_f32 {vr(dst,2)}, {vr(z,2)}, {vr(rho,2)} op_sel_hi:[1,0]")
    a(f"v_pk_fma_f32 {vr(dst,2)}, {vr(z,2)}, {vr(rho,2)}, {vr(dst,2)} op_sel:[1,1,0] op_sel_hi:[0,1,1] neg_lo:[1,0,0]")

def flit(x):
    return "0x%08x" % struct.unpack("<I", struct.pack("<f", x))[0]

def gen_k1():
    a = Asm()
    a(kernel_header("k1_kernel"))
    a(f"""
    s_cmp_ge_u32 s2, 512
    s_cbranch_scc1 k1_end
    s_cmp_lt_u32 s2, 64
    s_cbranch_scc1 k1_ln
    """)
    a.stamp(0)
    a(f"""
    s_load_dwordx16 s[4:19], s[0:1], 8
    s_load_dwordx2 s[20:21], s[0:1], 120
    s_load_dwordx4 s[32:35], s[0:1], 80
    s_load_dwordx2 s[36:37], s[0:1], 96
    s_sub_u32 s3, s2, 64
    s_getpc_b64 s[26:27]
k1_pc:
    s_add_u32 s38, s26, k2_kernel-k1_pc
    s_addc_u32 s39, s27, 0
    s_add_u32 s26, s26, k1_tab1-k1_pc
    s_addc_u32 s27, s27, 0
    v_lshlrev_b32 v1, 4, v0
    v_lshlrev_b32 v2, 5, v0
    global_load_dwordx4 v[4:7], v1, s[26:27]
    s_add_u32 s28, s26, 4096
    s_addc_u32 s29, s27, 0
    global_load_dwordx4 v[8:11], v2, s[28:29]
    global_load_dwordx4 v[12:15], v2, s[28:29] offset:16
    s_lshl_b32 s22, s3, 9
    v_lshlrev_b32 v1, 1, v0
    v_add_u32 v1, s22, v1
    v_mov_b32 v16, 0
    v_mov_b32 v17, 0
    v_mov_b32 v18, 0
    v_mov_b32 v19, 0
    v_mov_b32 v20, 0
    v_mov_b32 v21, 0
    s_lshr_b32 s23, s3, 1
    s_lshl_b32 s23, s23, 2
    s_waitcnt lgkmcnt(0)
    s_load_dword s22, s[16:17], s23
    global_load_short_d16_hi v16, v1, s[4:5]
    global_load_short_d16_hi v17, v1, s[6:7]
    global_load_short_d16_hi v18, v1, s[8:9]
    global_load_short_d16_hi v19, v1, s[10:11]
    global_load_short_d16_hi v20, v1, s[12:13]
    global_load_short_d16_hi v21, v1, s[14:15]
    v_and_b32 v2, 63, v0
    v_lshrrev_b32 v3, 6, v0
    s_mul_i32 s31, s3, 28
    v_readfirstlane_b32 s30, v3
    v_add_u32 v25, s31, v2
    v_lshlrev_b32 v25, 7, v25
    s_and_b32 s31, s3, 1
    s_lshl_b32 s31, s31, 13
    v_lshlrev_b32 v46, 7, v2
    v_add_u32 v46, s31, v46
    v_min_u32 v46, k4_end-k2_kernel, v46
    s_cmp_eq_u32 s30, 1
    s_cselect_b32 s32, s34, s32
    s_cselect_b32 s33, s35, s33
    s_cmp_eq_u32 s30, 2
    s_cselect_b32 s32, s36, s32
    s_cselect_b32 s33, s37, s33
    s_cmp_eq_u32 s30, 3
    s_cselect_b32 s32, s38, s32
    s_cselect_b32 s33, s39, s33
    s_cselect_b32 s31, 64, 28
    s_cselect_b64 vcc, -1, 0
    v_cndmask_b32 v25, v25, v46, vcc
    v_cmp_gt_u32 vcc, s31, v2
    s_and_saveexec_b64 s[40:41], vcc
    global_load_dword v25, v25, s[32:33]
    s_mov_b64 exec, s[40:41]
    s_mov_b32 s30, {XY_WAVE}
    v_mul_lo_u32 v3, v3, s30
    v_lshl_add_u32 v3, v2, 2, v3
    s_waitcnt lgkmcnt(0)
    s_lshl_b32 s24, s22, 16
    s_and_b32 s25, s22, 0xffff0000
    s_bitcmp1_b32 s3, 0
    s_cselect_b32 s22, s25, s24
    v_mov_b32 v22, s22
    v_mul_f32 v22, {flit(1.4426950408889634)}, v22
    v_exp_f32 v22, v22
    s_nop 0
    v_cvt_pk_bf16_f32 v22, v22, v22
    v_and_b32 v22, 0xffff0000, v22
    s_waitcnt vmcnt(1)
    v_mul_f32 v23, v22, v16
    v_mul_f32 v24, v22, v17
    v_mul_f32 v23, {flit(1.4426950408889634)}, v23
    v_mul_f32 v24, {flit(0.15915494309189535)}, v24
    v_mul_f32 v18, v22, v18
    v_mul_f32 v19, v22, v19
    v_mul_f32 v26, v20, v18
    v_mul_f32 v27, v20, v19
    v_fma_f32 v26, -v21, v19, v26
    v_fma_f32 v27, v21, v18, v27
    """)
    a.stamp(1)
    W, E1, E8, E256, E2, E4 = 26, 28, 30, 32, 34, 36
    def direct(dst, T):
        if T == 1:
            a("v_mov_b32 v46, v23"); a("v_fract_f32 v48, v24")
        else:
            a(f"v_mul_f32 v46, {flit(float(T))}, v23"); a(f"v_mul_f32 v48, {flit(float(T))}, v24"); a("v_fract_f32 v48, v48")
        a(f"v_exp_f32 v46, v46")
        a(f"v_cos_f32 v{dst}, v48")
        a(f"v_sin_f32 v{dst+1}, v48")
        a("s_nop 0")
        a(f"v_pk_mul_f32 {vr(dst,2)}, {vr(dst,2)}, v[46:47] op_sel_hi:[1,0]")
    direct(E8, 8); direct(E1, 1); direct(E256, 256)
    pk = [52, 53, 54, 55]; pki = [0]
    def emit_x(row, z):
        p = pk[pki[0] % 4]; pki[0] += 1
        a(f"v_cvt_pk_bf16_f32 v{p}, v{z}, -v{z+1}")
        a(f"ds_write_b32 v3, v{p} offset:{row*272}")
    def emit_y(b, z):
        p = pk[pki[0] % 4]; pki[0] += 1
        a(f"v_cvt_pk_bf16_f32 v{p}, v{z}, v{z+1}")
        a(f"ds_write_b32 v3, v{p} offset:{(21+b)*272}")
    a("v_mov_b32 v52, 0x3f80"); a(f"ds_write_b32 v3, v52 offset:{21*272}"); pki[0] = 1
    emit_y(1, E8)
    z0, z1 = 38, 40
    cur = E8
    for b in range(2, 32):
        nxt = z0 if cur != z0 else z1
        cmul(a, nxt, cur, E8); emit_y(b, nxt); cur = nxt
    emit_x(0, W)
    cur = W
    for e in range(1, 8):
        nxt = z0 if cur != z0 else z1
        cmul(a, nxt, cur, E1); emit_x(e, nxt); cur = nxt
    cmul(a, E2, E1, E1); cmul(a, E4, E2, E2)
    P0, P1 = 42, 44
    cmul(a, P0, W, E256); emit_x(8, P0)
    cur = P0
    for e in range(1, 4):
        nxt = z0 if cur != z0 else z1
        cmul(a, nxt, cur, E2); emit_x(8+e, nxt); cur = nxt
    cmul(a, P1, P0, E256); emit_x(12, P1)
    cmul(a, z0, P1, E4); emit_x(13, z0)
    cmul(a, P0, P1, E256); emit_x(14, P0)
    cmul(a, z0, P0, E4); emit_x(15, z0)
    cur, oth = P0, P1
    for r in range(16, 21):
        cmul(a, oth, cur, E256); emit_x(r, oth); cur, oth = oth, cur
    a.stamp(2)
    a(f"""
    v_lshrrev_b32 v60, 6, v0
    v_and_b32 v61, 15, v0
    v_lshrrev_b32 v62, 1, v60
    v_lshl_add_u32 v62, v62, 4, v61
    v_and_b32 v63, 1, v60
    v_lshl_add_u32 v63, v63, 4, v61
    v_add_u32 v63, 21, v63
    s_movk_i32 s30, 272
    v_mul_lo_u32 v62, v62, s30
    v_mul_lo_u32 v63, v63, s30
    v_bfe_u32 v61, v0, 4, 2
    v_lshl_add_u32 v62, v61, 4, v62
    v_lshl_add_u32 v63, v61, 4, v63
    s_waitcnt lgkmcnt(0)
    s_barrier
    """)
    a.stamp(3)
    def rd(s):
        off = (s >> 2)*XY_WAVE + (s & 3)*64
        slot = s % 8
        a(f"ds_read_b128 {vr(64+4*slot,4)}, v62 offset:{off}")
        a(f"ds_read_b128 {vr(96+4*slot,4)}, v63 offset:{off}")
    for s in range(6): rd(s)
    for s in range(16):
        last = min(s+5, 15)
        a(f"s_waitcnt lgkmcnt({2*(last-s)})")
        slot = s % 8
        c = "0" if s == 0 else "v[56:59]"
        a(f"v_mfma_f32_16x16x32_bf16 v[56:59], {vr(64+4*slot,4)}, {vr(96+4*slot,4)}, {c}")
        if s+6 < 16: rd(s+6)
    a.stamp(4)
    a(f"""
    s_nop 7
    s_nop 1
    v_cvt_pk_bf16_f32 v56, v56, v57
    v_cvt_pk_bf16_f32 v58, v58, v59
    s_waitcnt vmcnt(0)
    ds_write_b16 v4, v56
    ds_write_b16_d16_hi v5, v56
    ds_write_b16 v6, v58
    ds_write_b16_d16_hi v7, v58
    s_waitcnt lgkmcnt(0)
    s_barrier
    ds_read_u16 v64, v8
    ds_read_u16_d16_hi v72, v9
    ds_read_u16 v65, v10
    ds_read_u16_d16_hi v73, v11
    ds_read_u16 v66, v12
    ds_read_u16_d16_hi v74, v13
    ds_read_u16 v67, v14
    ds_read_u16_d16_hi v75, v15
    s_mul_i32 s22, s3, {G_STRIDE}
    s_add_u32 s22, s22, {WS_G}
    s_add_u32 s20, s20, s22
    s_addc_u32 s21, s21, 0
    v_lshlrev_b32 v1, 4, v0
    v_mov_b32 v68, 0
    v_mov_b32 v69, 0
    v_mov_b32 v70, 0
    v_mov_b32 v71, 0
    s_waitcnt lgkmcnt(0)
    v_or_b32 v64, v64, v72
    v_or_b32 v65, v65, v73
    v_or_b32 v66, v66, v74
    v_or_b32 v67, v67, v75
    global_store_dwordx4 v1, v[64:67], s[20:21]
    v_cmp_gt_u32 vcc, 4, v0
    s_and_saveexec_b64 s[24:25], vcc
    s_cbranch_execz k1_kend
    v_add_u32 v1, 4096, v1
    global_store_dwordx4 v1, v[68:71], s[20:21]
k1_kend:
    """)
    a.dump(5, 0)
    a("s_endpgm")
    a.label("k1_ln")
    a.stamp(0)
    a(f"""
    s_load_dwordx2 s[4:5], s[0:1], 0
    s_load_dwordx2 s[8:9], s[0:1], 120
    v_lshrrev_b32 v1, 6, v0
    s_nop 0
    v_readfirstlane_b32 s3, v1
    v_and_b32 v2, 3, v0
    v_bfe_u32 v3, v0, 2, 2
    v_bfe_u32 v4, v0, 4, 2
    v_lshl_add_u32 v5, v3, 3, v4
    s_movk_i32 s12, 896
    v_mul_lo_u32 v6, v5, s12
    v_lshl_add_u32 v6, v2, 4, v6
    v_lshl_add_u32 v6, v1, 6, v6
    v_add_u32 v7, 3584, v6
    s_mul_i32 s13, s2, 28672
    s_waitcnt lgkmcnt(0)
    s_add_u32 s4, s4, s13
    s_addc_u32 s5, s5, 0
    s_mov_b32 s10, 0x400000
    s_mov_b32 s11, 0x20000
    """)
    a(f"""
    v_mov_b32 v40, 0
    v_mov_b32 v41, 0
    v_mov_b32 v42, 0
    v_mov_b32 v43, 0
    v_mov_b32 v44, 0
    v_mov_b32 v45, 0
    v_mov_b32 v46, 0
    v_mov_b32 v47, 0
    s_cmp_ge_u32 s3, 2
    s_cbranch_scc1 k1_ln_skip1
    global_load_dwordx4 v[40:43], v6, s[4:5] offset:768
    global_load_dwordx4 v[44:47], v7, s[4:5] offset:768
k1_ln_skip1:
    """)
    for i in range(3):
        a(f"global_load_dwordx4 {vr(16+8*i,4)}, v6, s[4:5] offset:{256*i}")
        a(f"global_load_dwordx4 {vr(20+8*i,4)}, v7, s[4:5] offset:{256*i}")
    a(f"""
    v_and_b32 v48, 15, v0
    v_lshrrev_b32 v49, 2, v48
    v_and_b32 v50, 3, v48
    v_and_b32 v51, 1, v49
    v_lshlrev_b32 v51, 4, v51
    v_mov_b32 v52, 0x3f80
    v_lshlrev_b32 v52, v51, v52
    v_cmp_eq_u32 vcc, v50, v4
    s_nop 1
    v_cndmask_b32 v52, 0, v52, vcc
    v_cmp_gt_u32 vcc, 2, v49
    s_nop 1
    v_cndmask_b32 v8, 0, v52, vcc
    """)
    a(f"""
    v_sub_u32 v9, v52, v8
    v_mov_b32 v10, 0
    v_mov_b32 v11, 0
    v_mov_b32 v12, v8
    v_mov_b32 v13, v9
    s_mov_b32 s14, 0x3f803f80
    s_mov_b32 s15, 0xffff0000
    v_mov_b32 v48, 0
    v_mov_b32 v49, 0
    v_mov_b32 v50, 0
    v_mov_b32 v51, 0
    """)
    a(f"""
    v_lshlrev_b32 v14, 11, v1
    v_lshl_add_u32 v14, v4, 8, v14
    v_lshrrev_b32 v15, 1, v2
    v_lshl_add_u32 v14, v15, 7, v14
    v_lshl_add_u32 v14, v3, 5, v14
    v_and_b32 v15, 1, v2
    v_lshl_add_u32 v14, v15, 4, v14
    """)
    for i in range(4):
        if i < 3: a(f"s_waitcnt vmcnt({2*(2-i)})")
        for T in range(2):
            for k in range(4):
                r = 16+8*i+4*T+k
                a(f"v_dot2c_f32_bf16 v{48+2*T}, s14, v{r}")
                a(f"v_dot2c_f32_bf16 v{49+2*T}, v{r}, v{r}")
    a.stamp(1)
    a(f"""
    s_nop 2
    v_add_f32_dpp v48, v48, v48 quad_perm:[1,0,3,2] row_mask:0xf bank_mask:0xf
    v_add_f32_dpp v49, v49, v49 quad_perm:[1,0,3,2] row_mask:0xf bank_mask:0xf
    v_add_f32_dpp v50, v50, v50 quad_perm:[1,0,3,2] row_mask:0xf bank_mask:0xf
    v_add_f32_dpp v51, v51, v51 quad_perm:[1,0,3,2] row_mask:0xf bank_mask:0xf
    s_nop 0
    v_add_f32_dpp v48, v48, v48 quad_perm:[2,3,0,1] row_mask:0xf bank_mask:0xf
    v_add_f32_dpp v49, v49, v49 quad_perm:[2,3,0,1] row_mask:0xf bank_mask:0xf
    v_add_f32_dpp v50, v50, v50 quad_perm:[2,3,0,1] row_mask:0xf bank_mask:0xf
    v_add_f32_dpp v51, v51, v51 quad_perm:[2,3,0,1] row_mask:0xf bank_mask:0xf
    v_lshlrev_b32 v52, 3, v5
    v_lshl_add_u32 v53, v1, 8, v52
    ds_write_b64 v53, v[48:49]
    ds_write_b64 v53, v[50:51] offset:32
    s_waitcnt lgkmcnt(0)
    s_barrier
    ds_read_b64 v[54:55], v52
    ds_read_b64 v[56:57], v52 offset:256
    ds_read_b64 v[58:59], v52 offset:512
    ds_read_b64 v[60:61], v52 offset:768
    ds_read_b64 v[62:63], v52 offset:32
    ds_read_b64 v[64:65], v52 offset:288
    ds_read_b64 v[66:67], v52 offset:544
    ds_read_b64 v[68:69], v52 offset:800
    s_waitcnt lgkmcnt(0)
    v_pk_add_f32 v[54:55], v[54:55], v[56:57]
    v_pk_add_f32 v[58:59], v[58:59], v[60:61]
    v_pk_add_f32 v[62:63], v[62:63], v[64:65]
    v_pk_add_f32 v[66:67], v[66:67], v[68:69]
    v_pk_add_f32 v[48:49], v[54:55], v[58:59]
    v_pk_add_f32 v[50:51], v[62:63], v[66:67]
    """)
    inv = flit(1.0/448.0)
    for T in range(2):
        S, Q = 48+2*T, 49+2*T
        M, R = 54+4*T, 56+4*T
        a(f"""
        v_mul_f32 v{S}, {inv}, v{S}
        v_mul_f32 v{Q}, {inv}, v{Q}
        v_fma_f32 v{Q}, -v{S}, v{S}, v{Q}
        v_max_f32 v{Q}, 0, v{Q}
        v_cvt_pk_bf16_f32 v{S}, v{S}, v{Q}
        v_lshlrev_b32 v{M}, 16, v{S}
        v_and_b32 v{Q}, s15, v{S}
        v_add_f32 v{Q}, {flit(1e-5)}, v{Q}
        v_cvt_pk_bf16_f32 v{Q}, v{Q}, v{Q}
        v_and_b32 v{Q}, s15, v{Q}
        v_sqrt_f32 v{Q}, v{Q}
        s_nop 0
        v_cvt_pk_bf16_f32 v{Q}, v{Q}, v{Q}
        v_and_b32 v{Q}, s15, v{Q}
        v_rcp_f32 v{R}, v{Q}
        v_xor_b32 v{M}, 0x80000000, v{M}
        """)
    a.stamp(2)
    a(f"""
    s_add_u32 s16, s13, {WS_UT}
    s_add_u32 s17, s13, {WS_XT}
    """)
    for i in range(4):
        if i == 3:
            a("s_cmp_ge_u32 s3, 2"); a("s_cbranch_scc1 k1_lend")
        U = 72
        for T in range(2):
            M, R = 54+4*T, 56+4*T
            for k in range(4):
                x = 16+8*i+4*T+k
                t = 64 + 2*(k % 2)
                a(f"v_lshlrev_b32 v{t}, 16, v{x}")
                a(f"v_and_b32 v{t+1}, s15, v{x}")
                a(f"v_pk_add_f32 {vr(t,2)}, {vr(t,2)}, {vr(M,2)} op_sel_hi:[1,0]")
                a(f"v_cvt_pk_bf16_f32 v{t}, v{t}, v{t+1}")
                a(f"v_and_b32 v{t+1}, s15, v{t}")
                a(f"v_lshlrev_b32 v{t}, 16, v{t}")
                a(f"v_pk_mul_f32 {vr(t,2)}, {vr(t,2)}, {vr(R,2)} op_sel_hi:[1,0]")
                a(f"v_cvt_pk_bf16_f32 v{U+4*T+k}, v{t}, v{t+1}")
        for s in range(2):
            for T in range(2):
                a(f"v_mfma_f32_16x16x32_bf16 {vr(96+8*s+4*T,4)}, {vr(8+2*s,4)}, {vr(16+8*i+4*T,4)}, 0")
        for s in range(2):
            for T in range(2):
                a(f"v_mfma_f32_16x16x32_bf16 {vr(80+8*s+4*T,4)}, {vr(8+2*s,4)}, {vr(U+4*T,4)}, 0")
        a("s_nop 4")
        for (base, soff) in ((96, "s17"), (80, "s16")):
            for s in range(2):
                D = base + 8*s
                O = 112 + 4*s + (8 if base == 80 else 0)
                a(f"v_cvt_pk_bf16_f32 v{O}, v{D}, v{D+1}")
                a(f"v_cvt_pk_bf16_f32 v{O+1}, v{D+2}, v{D+3}")
                a(f"v_cvt_pk_bf16_f32 v{O+2}, v{D+4}, v{D+5}")
                a(f"v_cvt_pk_bf16_f32 v{O+3}, v{D+6}, v{D+7}")
                a(f"buffer_store_dwordx4 {vr(O,4)}, v14, s[8:11], {soff} offen offset:{1024*s}")
            if base == 96: a("s_nop 0")
        a("s_add_u32 s16, s16, 8192"); a("s_add_u32 s17, s17, 8192")
    a.label("k1_lend")
    a.dump(3, 0)
    a.label("k1_end")
    a("s_endpgm")
    t1, t2 = tables()
    a.lines.append(".p2align 6")
    a.lines.append(".type k1_tab1,@object")
    a.lines.append("k1_tab1:")
    for i in range(0, len(t1), 8): a.lines.append("    .long " + ", ".join(str(x) for x in t1[i:i+8]))
    for i in range(0, len(t2), 8): a.lines.append("    .long " + ", ".join(str(x) for x in t2[i:i+8]))
    a.lines.append(".size k1_tab1, %d" % (4*(len(t1)+len(t2))))
    return a.text()
```

```python
from common import *
from k1 import flit

LB = 128
GC = 4160
CH_STRIDE = 37888
UOFF = 33280
XB = LB + 2*CH_STRIDE
K2_LDS = XB + 16384

def gen_k2(mimic=True):
    a = Asm()
    a(kernel_header("k2_kernel"))
    a(f"""
    s_cmp_ge_u32 s2, 224
    s_cbranch_scc1 k2_end
    s_load_dwordx2 s[4:5], s[0:1], 120
    s_load_dwordx2 s[6:7], s[0:1], 64
    v_lshrrev_b32 v1, 6, v0
    v_and_b32 v2, 63, v0
    v_readfirstlane_b32 s3, v1
    s_lshr_b32 s8, s2, 4
    s_lshl_b32 s8, s8, 5
    s_and_b32 s9, s2, 1
    s_lshl_b32 s9, s9, 4
    s_add_u32 s8, s8, s9
    s_bfe_u32 s9, s2, 0x30001
    s_add_u32 s8, s8, s9
    s_lshr_b32 s10, s3, 1
    s_and_b32 s11, s3, 1
    s_lshl_b32 s9, s10, 3
    s_add_u32 s8, s8, s9
    s_lshl_b32 s12, s2, 7
    s_mul_i32 s13, s8, {G_STRIDE}
    s_lshl_b32 s14, s11, 11
    s_add_u32 s13, s13, s14
    s_add_u32 s13, s13, {WS_G}
    s_lshr_b32 s15, s8, 1
    s_lshl_b32 s15, s15, 2
    s_mul_i32 s16, s10, {CH_STRIDE}
    s_add_u32 s16, s16, {LB}
    s_waitcnt lgkmcnt(0)
    s_load_dword s17, s[6:7], s15
    s_add_u32 s20, s4, s13
    s_addc_u32 s21, s5, 0
    v_lshlrev_b32 v3, 4, v2
    """)
    a.stamp(0)
    a(f"""
    global_load_dwordx4 v[16:19], v3, s[20:21]
    global_load_dwordx4 v[20:23], v3, s[20:21] offset:16
    global_load_dwordx4 v[24:27], v3, s[20:21] offset:1024
    global_load_dwordx4 v[28:31], v3, s[20:21] offset:1040
    """)
    a(f"""
    v_lshrrev_b32 v4, 3, v0
    s_movk_i32 s18, 28672
    v_mul_lo_u32 v5, v4, s18
    v_and_b32 v6, 7, v0
    v_lshl_add_u32 v5, v6, 4, v5
    s_add_u32 s22, s4, s12
    s_addc_u32 s23, s5, 0
    s_add_u32 s24, s22, {WS_UT + 32*28672}
    s_addc_u32 s25, s23, 0
    s_add_u32 s26, s22, {WS_XT}
    s_addc_u32 s27, s23, 0
    global_load_dwordx4 v[32:35], v5, s[22:23]
    global_load_dwordx4 v[36:39], v5, s[24:25]
    """)
    assert WS_UT == 0
    a(f"""
    v_and_b32 v7, 15, v2
    v_lshrrev_b32 v8, 4, v2
    v_lshrrev_b32 v9, 1, v7
    s_lshl_b32 s19, s11, 5
    v_add_u32 v9, s19, v9
    v_mul_lo_u32 v9, v9, s18
    v_and_b32 v10, 1, v7
    v_lshl_add_u32 v9, v10, 6, v9
    v_lshrrev_b32 v10, 1, v8
    v_lshl_add_u32 v9, v10, 5, v9
    v_and_b32 v10, 1, v8
    v_lshl_add_u32 v9, v10, 3, v9
    s_lshl_b32 s19, s10, 4
    v_add_u32 v9, s19, v9
    """)
    for k in range(4):
        a(f"global_load_dwordx2 {vr(40+2*k,2)}, v9, s[26:27]")
        if k < 3: a(f"v_add_u32 v9, {8*28672}, v9")
    a(f"""
    s_lshl_b32 s19, s11, 11
    s_add_u32 s19, s19, s16
    v_add_u32 v11, s19, v3
    v_and_b32 v12, 1, v0
    s_mov_b32 s28, {CH_STRIDE}
    v_mul_lo_u32 v12, v12, s28
    v_lshl_add_u32 v12, v4, 6, v12
    v_bfe_u32 v13, v0, 1, 2
    v_lshl_add_u32 v12, v13, 4, v12
    v_add_u32 v12, {LB+UOFF+480}, v12
    """)
    a(f"""
    v_mov_b32 v48, 0
    v_mov_b32 v49, 0
    v_mov_b32 v50, 0
    v_mov_b32 v51, 0
    v_lshrrev_b32 v13, 5, v2
    v_mul_lo_u32 v13, v13, s28
    v_and_b32 v14, 31, v2
    v_lshl_add_u32 v13, v14, 4, v13
    v_add_u32 v13, {LB+UOFF}, v13
    v_cmp_gt_u32 vcc, 30, v14
    s_cmp_lg_u32 s3, 0
    s_cbranch_scc1 k2_nopad
    s_and_saveexec_b64 s[30:31], vcc
    ds_write_b128 v13, v[48:51]
    s_mov_b64 exec, s[30:31]
k2_nopad:
    s_movk_i32 s29, {GC}
    v_mul_lo_u32 v13, v2, s29
    s_add_u32 s19, s16, 4096
    v_add_u32 v13, s19, v13
    v_cmp_gt_u32 vcc, 8, v2
    s_cmp_eq_u32 s11, 0
    s_cbranch_scc1 k2_nopad2
    s_and_saveexec_b64 s[30:31], vcc
    ds_write_b128 v13, v[48:51]
    s_mov_b64 exec, s[30:31]
k2_nopad2:
    """)
    for r in range(96, 128): a(f"v_mov_b32 v{r}, 0")
    a(f"""
    v_and_b32 v52, 7, v7
    v_sub_u32 v52, 7, v52
    v_mul_lo_u32 v14, v52, s29
    v_lshrrev_b32 v52, 3, v7
    v_sub_u32 v52, v8, v52
    v_add_u32 v52, 253, v52
    v_lshl_add_u32 v14, v52, 4, v14
    s_lshl_b32 s19, s11, 8
    s_sub_u32 s30, s16, s19
    s_sub_u32 s31, s30, 3584
    v_add_u32 v14, s31, v14
    v_lshlrev_b32 v15, 5, v7
    v_lshl_add_u32 v15, v8, 4, v15
    s_add_u32 s31, s30, {UOFF+448}
    v_add_u32 v15, s31, v15
    """)
    a.stamp(1)
    for i in range(2):
        D = 16 + 8*i
        E, E2, D2 = 56, 62, 68
        if i == 0: a("s_waitcnt vmcnt(8)")
        else: a("s_waitcnt vmcnt(6)")
        for k in range(6): a(f"v_alignbit_b32 v{E+k}, v{D+k+1}, v{D+k}, 16")
        for k in range(6): a(f"v_alignbit_b32 v{E2+k}, v{D+k+2}, v{D+k+1}, 16")
        for k in range(6): a(f"v_mov_b32 v{D2+k}, v{D+k+1}")
        src = {0: D, 1: E, 2: D2, 3: E2, 4: D+2, 5: E+2, 6: D2+2, 7: E2+2}
        for s in range(8):
            a(f"ds_write_b128 v11, {vr(src[s],4)} offset:{s*GC + i*1024}")
        if i == 0: a("s_nop 1")
    a(f"""
    s_waitcnt vmcnt(4)
    ds_write_b128 v12, v[32:35]
    ds_write_b128 v12, v[36:39] offset:2048
    s_waitcnt lgkmcnt(0)
    s_barrier
    """)
    a.stamp(2)
    A0, B0, ACC = 128, 160, 96
    def rdA(t): a(f"ds_read_b128 {vr(A0+4*t,4)}, v14 offset:{512*(7-t)}")
    def rdB(t): a(f"ds_read_b128 {vr(B0+4*t,4)}, v15 offset:{512*t}")
    for t in range(7, -1, -1): rdA(t); rdB(t)
    a("s_mov_b32 s19, 4")
    a.label("k2_loop")
    a("v_subrev_u32 v14, 64, v14"); a("v_subrev_u32 v15, 64, v15")
    def mf(c, tau):
        a(f"v_mfma_f32_16x16x32_bf16 {vr(ACC+4*c,4)}, {vr(A0+4*tau,4)}, {vr(B0+4*(c-tau),4)}, {vr(ACC+4*c,4)}")
    for (tau, wait) in ((3, 6), (4, None), (2, 4), (5, None), (1, 2), (6, None), (0, 0), (7, None)):
        if wait is not None: a(f"s_waitcnt lgkmcnt({wait})")
        mf(7, tau)
    rdA(7); rdB(7)
    for c in range(6, -1, -1):
        for tau in range(c+1): mf(c, tau)
        rdA(c); rdB(c)
    a(f"""
    s_sub_u32 s19, s19, 1
    s_cmp_lg_u32 s19, 0
    s_cbranch_scc1 k2_loop
    """)
    a.stamp(3)
    a(f"""
    s_lshl_b32 s19, s3, 12
    s_add_u32 s19, s19, {XB}
    v_add_u32 v52, s19, v3
    s_xor_b32 s19, s3, 1
    s_lshl_b32 s19, s19, 12
    s_add_u32 s19, s19, {XB}
    v_add_u32 v53, s19, v3
    v_lshlrev_b32 v54, 5, v7
    v_lshl_add_u32 v54, v8, 3, v54
    s_lshl_b32 s19, s11, 11
    s_add_u32 s30, s16, s19
    s_add_u32 s30, s30, {UOFF+480}
    v_add_u32 v55, s30, v54
    s_lshl_b32 s30, s8, 12
    s_add_u32 s30, s30, s19
    s_add_u32 s30, s30, {WS_HT}
    s_add_u32 s20, s4, s30
    s_addc_u32 s21, s5, 0
    s_waitcnt lgkmcnt(0)
    s_cmp_eq_u32 s11, 0
    s_cbranch_scc0 k2_x1
    """)
    assert XB % 8192 == 0 or True
    F = 128
    def xch(send, keep):
        for k in range(4): a(f"ds_write_b128 v52, {vr(ACC+4*(send+k),4)} offset:{1024*k}")
        a("s_waitcnt lgkmcnt(0)"); a("s_barrier")
        for k in range(4): a(f"ds_read_b128 {vr(144+4*k,4)}, v53 offset:{1024*k}")
        for k in range(4):
            a(f"s_waitcnt lgkmcnt({3-k})")
            a(f"v_pk_add_f32 {vr(F+4*k,2)}, {vr(ACC+4*(keep+k),2)}, {vr(144+4*k,2)}")
            a(f"v_pk_add_f32 {vr(F+4*k+2,2)}, {vr(ACC+4*(keep+k)+2,2)}, {vr(146+4*k,2)}")
    xch(4, 0)
    a("s_branch k2_x2")
    a.label("k2_x1")
    xch(0, 4)
    a.label("k2_x2")
    a.stamp(4)
    a(f"""
    s_lshl_b32 s24, s17, 16
    s_and_b32 s25, s17, 0xffff0000
    s_bitcmp1_b32 s8, 0
    s_cselect_b32 s24, s25, s24
    s_mov_b32 s25, s24
    s_mov_b32 s15, 0xffff0000
    """)
    for k in range(4): a(f"ds_read_b64 {vr(160+2*k,2)}, v55 offset:{512*k}")
    a("s_waitcnt vmcnt(0) lgkmcnt(0)")
    def unpack(dst, src):
        a(f"v_lshlrev_b32 v{dst}, 16, v{src}"); a(f"v_and_b32 v{dst+1}, s15, v{src}")
        a(f"v_lshlrev_b32 v{dst+2}, 16, v{src+1}"); a(f"v_and_b32 v{dst+3}, s15, v{src+1}")
    def pack(dst, src):
        a(f"v_cvt_pk_bf16_f32 v{dst}, v{src}, v{src+1}"); a(f"v_cvt_pk_bf16_f32 v{dst+1}, v{src+2}, v{src+3}")
    for k in range(4):
        Fk = F+4*k; U, X, T, P = 56, 60, 64, 68
        unpack(U, 160+2*k)
        if mimic:
            pack(P, Fk); unpack(Fk, P)
            a(f"v_pk_mul_f32 {vr(U,2)}, {vr(U,2)}, s[24:25]"); a(f"v_pk_mul_f32 {vr(U+2,2)}, {vr(U+2,2)}, s[24:25]")
            pack(P, U); unpack(U, P)
            a(f"v_pk_add_f32 {vr(Fk,2)}, {vr(Fk,2)}, {vr(U,2)}"); a(f"v_pk_add_f32 {vr(Fk+2,2)}, {vr(Fk+2,2)}, {vr(U+2,2)}")
            pack(P, Fk); unpack(Fk, P)
        else:
            a(f"v_pk_fma_f32 {vr(Fk,2)}, {vr(U,2)}, s[24:25], {vr(Fk,2)}"); a(f"v_pk_fma_f32 {vr(Fk+2,2)}, {vr(U+2,2)}, s[24:25], {vr(Fk+2,2)}")
        unpack(X, 40+2*k)
        a(f"v_pk_add_f32 {vr(Fk,2)}, {vr(Fk,2)}, {vr(X,2)}"); a(f"v_pk_add_f32 {vr(Fk+2,2)}, {vr(Fk+2,2)}, {vr(X+2,2)}")
        pack(72+2*k, Fk)
        a(f"global_store_dwordx2 v54, {vr(72+2*k,2)}, s[20:21] offset:{512*k}")
    a.dump(5, 1)
    a.label("k2_end")
    a("s_endpgm")
    return a.text()
```

```python
from common import *
from k1 import flit

K3_LDS = 163840
RING = 114688
NV = 256
ACC, HF, WF0, WF1 = 128, 32, 64, 80
VH, VWR, VT = 8, 16, 18
MEANS = RING
CSB = RING + 512

def gen_k3():
    a = Asm()
    a(kernel_header("k3_kernel"))
    a(f"""
    s_cmp_ge_u32 s2, 224
    s_cbranch_scc1 k3_end
    s_load_dwordx4 s[4:7], s[0:1], 80
    s_load_dwordx2 s[8:9], s[0:1], 120
    v_lshrrev_b32 v1, 6, v0
    v_and_b32 v2, 63, v0
    v_readfirstlane_b32 s47, v1
    s_and_b32 s10, s2, 7
    s_lshr_b32 s11, s2, 3
    s_lshr_b32 s12, s10, 1
    s_lshl_b32 s12, s12, 2
    s_and_b32 s13, s11, 3
    s_add_u32 s12, s12, s13
    s_and_b32 s13, s10, 1
    s_mul_i32 s13, s13, 7
    s_lshr_b32 s14, s11, 2
    s_add_u32 s13, s13, s14
    s_and_b32 s3, s47, 3
    """)
    a.stamp(0)
    a(f"""
    v_lshrrev_b32 v3, 4, v2
    v_and_b32 v4, 15, v2
    v_lshrrev_b32 v7, 2, v2
    v_and_b32 v24, 7, v7
    s_lshl_b32 s14, s3, 1
    v_xor_b32 v24, s14, v24
    v_and_b32 v25, 3, v2
    v_lshlrev_b32 v26, 8, v7
    v_lshl_add_u32 v26, v25, 3, v26
    s_cmp_ge_u32 s47, 4
    s_cbranch_scc1 k3_aux
    """)
    for i in range(8):
        a(f"v_xor_b32 v27, {i}, v24"); a(f"v_lshl_add_u32 v{VH+i}, v27, 5, v26")
    a(f"""
    v_add_u32 v{VWR}, {RING}, v{VH}
    v_add_u32 v{VWR+1}, {RING}, v{VH+1}
    """)
    for r in range(ACC, ACC+128): a(f"v_mov_b32 v{r}, 0")
    def rdW(S):
        for t in range(4):
            for hh in range(2):
                a(f"ds_read_b64_tr_b16 {vr(S+4*t+2*hh,2)}, v{VT+(t&1)} offset:{(t>>1)*8192+hh*4096}")
    def rdH(i, off):
        for hh in range(2):
            a(f"ds_read_b64_tr_b16 {vr(HF+4*i+2*hh,2)}, v{VH+i} offset:{off+hh*4096}")
    a.stamp(1)
    a(f"""
    s_mov_b32 s45, 0
    v_mov_b32 v{VT}, v{VWR}
    v_mov_b32 v{VT+1}, v{VWR+1}
    s_waitcnt lgkmcnt(0)
    s_barrier
    """)
    rdW(WF0)
    for i in range(8): rdH(i, 0)
    a("s_mov_b32 s46, 0")
    a.stamp(2)
    a.label("k3_loop")
    for P in range(2):
        Wc, Wn = (WF0, WF1) if P == 0 else (WF1, WF0)
        a(f"""
        s_add_u32 s45, s45, 16384
        s_cmp_eq_u32 s45, 49152
        s_cselect_b32 s45, 0, s45
        v_add_u32 v{VT}, s45, v{VWR}
        v_add_u32 v{VT+1}, s45, v{VWR+1}
        s_waitcnt lgkmcnt(14)
        s_barrier
        """)
        rdW(Wn)
        for i in range(8):
            a("s_waitcnt lgkmcnt(15)")
            for t in range(4):
                acc = ACC + (i*4+t)*4
                a(f"v_mfma_f32_16x16x32_bf16 {vr(acc,4)}, {vr(Wc+4*t,4)}, {vr(HF+4*i,4)}, {vr(acc,4)}")
            rdH(i, 8192*(P+1))
    for i in range(8): a(f"v_add_u32 v{VH+i}, 16384, v{VH+i}")
    a(f"""
    s_add_u32 s46, s46, 2
    s_cmp_lt_u32 s46, 14
    s_cbranch_scc1 k3_loop
    """)
    a.stamp(3)
    a(f"""
    s_add_u32 s32, s8, {WS_HP}
    s_addc_u32 s33, s9, 0
    s_mov_b32 s34, {2048*1792*2}
    s_mov_b32 s35, 0x20000
    v_lshlrev_b32 v28, 2, v4
    s_lshl_b32 s14, s3, 7
    s_add_u32 s14, s14, {RING}
    v_lshlrev_b32 v29, 4, v3
    v_add_u32 v29, s14, v29
    s_mul_i32 s14, s12, {8*56}
    s_lshl_b32 s17, s13, 2
    s_add_u32 s14, s14, s17
    s_add_u32 s14, s14, s3
    s_lshl_b32 s14, s14, 10
    s_lshl_b32 s17, s3, 1
    v_lshlrev_b32 v30, 4, v2
    s_waitcnt lgkmcnt(0)
    s_barrier
    """)
    CSR = 48
    for t in range(4):
        a(f"ds_read_b128 {vr(CSR+4*t,4)}, v29 offset:{CSB - RING + (t>>1)*512 + (t&1)*64}")
    for aa in range(4):
        a(f"s_xor_b32 s18, s3, {aa}")
        a(f"s_lshl_b32 s18, s18, 7")
        a(f"s_add_u32 s18, s18, {MEANS}")
        a(f"v_add_u32 v31, s18, v28")
        a(f"ds_read_b32 v{32+2*aa}, v31")
        a(f"ds_read_b32 v{33+2*aa}, v31 offset:64")
    a("s_waitcnt lgkmcnt(0)")
    a.stamp(4)
    for i in range(8):
        mreg = 32 + (i & ~1)
        sel = i & 1
        O = 40 + 4*(i % 2)
        for t in range(4):
            acc = ACC + (i*4+t)*4
            for hp in range(2):
                a(f"v_pk_fma_f32 {vr(acc+2*hp,2)}, {vr(CSR+4*t+2*hp,2)}, {vr(mreg,2)}, {vr(acc+2*hp,2)} op_sel:[0,{sel},0] op_sel_hi:[1,{sel},1] neg_lo:[0,1,0] neg_hi:[0,1,0]")
        for t in range(2):
            g = ACC + (i*4+t)*4; u = ACC + (i*4+t+2)*4
            for hp in range(2):
                a(f"v_pk_mul_f32 {vr(g+2*hp,2)}, {vr(g+2*hp,2)}, {vr(u+2*hp,2)}")
        for t in range(2):
            g = ACC + (i*4+t)*4
            a(f"v_cvt_pk_bf16_f32 v{O+2*t}, v{g}, v{g+1}")
            a(f"v_cvt_pk_bf16_f32 v{O+2*t+1}, v{g+2}, v{g+3}")
        a(f"s_xor_b32 s18, s17, {i}")
        a(f"s_mul_i32 s18, s18, 57344")
        a(f"s_add_u32 s18, s18, s14")
        a(f"buffer_store_dwordx4 {vr(O,4)}, v30, s[32:35], s18 offen")
    a.dump(5, 2)
    a("s_endpgm")
    a.label("k3_aux")
    for i in range(2):
        a(f"v_xor_b32 v27, {i}, v24"); a(f"v_lshl_add_u32 v{VH+i}, v27, 5, v26")
    a(f"""
    v_add_u32 v{VWR}, {RING}, v{VH}
    v_add_u32 v{VWR+1}, {RING}, v{VH+1}
    v_lshrrev_b32 v5, 1, v4
    v_and_b32 v6, 1, v2
    s_lshl_b32 s14, s3, 15
    s_lshl_b32 s15, s12, 8
    s_add_u32 s14, s14, s15
    v_lshlrev_b32 v7, 12, v3
    v_lshl_add_u32 v7, v6, 4, v7
    v_add_u32 v7, s14, v7
    v_xor_b32 v27, v5, v3
    v_or_b32 v28, 4, v3
    v_xor_b32 v28, v5, v28
    v_lshl_add_u32 v20, v27, 5, v7
    v_lshl_add_u32 v21, v28, 5, v7
    v_add_u32 v21, {4*4096-1024}, v21
    s_lshl_b32 s14, s3, 3
    v_add_u32 v7, s14, v3
    s_movk_i32 s14, 3584
    v_mul_lo_u32 v7, v7, s14
    v_lshl_add_u32 v7, v6, 4, v7
    s_lshl_b32 s14, s13, 8
    v_add_u32 v7, s14, v7
    v_lshl_add_u32 v22, v27, 5, v7
    v_lshl_add_u32 v23, v28, 5, v7
    v_add_u32 v23, {4*3584-1024}, v23
    s_lshl_b32 s16, s3, 11
    s_add_u32 s16, s16, {RING}
    s_mov_b32 s40, 0
    s_mov_b32 s41, 0
    s_lshl_b32 s42, s3, 11
    s_mov_b32 s44, 0
    s_waitcnt lgkmcnt(0)
    s_add_u32 s20, s8, {WS_HT}
    s_addc_u32 s21, s9, 0
    s_mov_b32 s22, {448*4096}
    s_mov_b32 s23, 0x20000
    s_mov_b32 s24, s4
    s_mov_b32 s25, s5
    s_mov_b32 s26, {448*3584}
    s_mov_b32 s27, 0x20000
    s_mov_b32 s28, s6
    s_mov_b32 s29, s7
    s_mov_b32 s30, {448*3584}
    s_mov_b32 s31, 0x20000
    """)
    def dma_group():
        a("s_add_u32 s43, s16, s44")
        a("s_mov_b32 m0, s43")
        a("s_add_u32 s43, s43, 8192")
        a("buffer_load_dwordx4 v22, s[24:27], s41 offen lds")
        a("buffer_load_dwordx4 v23, s[24:27], s41 offen offset:1024 lds")
        a("s_mov_b32 m0, s43")
        a("s_add_u32 s44, s44, 16384")
        a("buffer_load_dwordx4 v22, s[28:31], s41 offen lds")
        a("buffer_load_dwordx4 v23, s[28:31], s41 offen offset:1024 lds")
        a("s_mov_b32 m0, s42")
        a("s_cmp_eq_u32 s44, 49152")
        a("s_cselect_b32 s44, 0, s44")
        a("buffer_load_dwordx4 v20, s[20:23], s40 offen lds")
        a("buffer_load_dwordx4 v21, s[20:23], s40 offen offset:1024 lds")
        a("s_add_u32 s40, s40, 131072")
        a("s_add_u32 s41, s41, 114688")
        a("s_add_u32 s42, s42, 8192")
    for g in range(3): dma_group()
    for r in range(24, 32): a(f"v_mov_b32 v{r}, 0")
    a("s_mov_b32 s38, 0x3f803f80")
    a("s_mov_b32 s45, 0")
    def process():
        a(f"v_add_u32 v{VT}, s45, v{VWR}"); a(f"v_add_u32 v{VT+1}, s45, v{VWR+1}")
        for i in range(2):
            for hh in range(2): a(f"ds_read_b64_tr_b16 {vr(32+4*i+2*hh,2)}, v{VH+i} offset:{hh*4096}")
        for t in range(4):
            for hh in range(2): a(f"ds_read_b64_tr_b16 {vr(40+4*t+2*hh,2)}, v{VT+(t&1)} offset:{(t>>1)*8192+hh*4096}")
        a(f"v_add_u32 v{VH}, 8192, v{VH}"); a(f"v_add_u32 v{VH+1}, 8192, v{VH+1}")
        a("s_add_u32 s45, s45, 16384"); a("s_cmp_eq_u32 s45, 49152"); a("s_cselect_b32 s45, 0, s45")
        a("s_waitcnt lgkmcnt(8)")
        for i in range(2):
            for k in range(4):
                a(f"v_dot2c_f32_bf16 v{24+2*i}, s38, v{32+4*i+k}")
                a(f"v_dot2c_f32_bf16 v{25+2*i}, v{32+4*i+k}, v{32+4*i+k}")
        a("s_waitcnt lgkmcnt(0)")
        for t in range(4):
            for k in range(4):
                a(f"v_dot2c_f32_bf16 v{28+t}, s38, v{40+4*t+k}")
    a("s_waitcnt vmcnt(12)"); a("s_barrier")
    process()
    a("s_mov_b32 s46, 0")
    a.label("k3_aloop")
    a(f"""
    s_cmp_lt_u32 s46, 12
    s_cbranch_scc1 k3_al_a
    s_waitcnt vmcnt(0)
k3_al_a:
    s_waitcnt vmcnt(6)
    s_barrier
    s_cmp_gt_u32 s46, 10
    s_cbranch_scc1 k3_al_b
    """)
    dma_group()
    a.label("k3_al_b")
    a("s_cmp_eq_u32 s46, 13"); a("s_cbranch_scc1 k3_al_done")
    process()
    a("s_add_u32 s46, s46, 1"); a("s_branch k3_aloop")
    a.label("k3_al_done")
    a("s_nop 2")
    for r in range(24, 32): a(f"v_mov_b32 v{r+8}, v{r}")
    a("s_nop 1")
    for r in range(24, 32): a(f"v_permlane16_swap_b32 v{r}, v{r+8}")
    for r in range(24, 32): a(f"v_add_f32 v{r}, v{r}, v{r+8}")
    for r in range(24, 32): a(f"v_mov_b32 v{r+8}, v{r}")
    a("s_nop 1")
    for r in range(24, 32): a(f"v_permlane32_swap_b32 v{r}, v{r+8}")
    for r in range(24, 32): a(f"v_add_f32 v{r}, v{r}, v{r+8}")
    a("s_mov_b32 s15, 0xffff0000")
    inv = flit(1.0/448.0)
    for T in range(2):
        S, Q = 24+2*T, 25+2*T
        a(f"""
        v_mul_f32 v{S}, {inv}, v{S}
        v_mul_f32 v{Q}, {inv}, v{Q}
        v_fma_f32 v{Q}, -v{S}, v{S}, v{Q}
        v_max_f32 v{Q}, 0, v{Q}
        v_cvt_pk_bf16_f32 v{S}, v{S}, v{Q}
        v_and_b32 v{Q}, s15, v{S}
        v_lshlrev_b32 v{S}, 16, v{S}
        v_add_f32 v{Q}, {flit(1e-5)}, v{Q}
        v_cvt_pk_bf16_f32 v{Q}, v{Q}, v{Q}
        v_and_b32 v{Q}, s15, v{Q}
        v_sqrt_f32 v{Q}, v{Q}
        s_nop 0
        v_cvt_pk_bf16_f32 v{Q}, v{Q}, v{Q}
        v_and_b32 v{Q}, s15, v{Q}
        v_rcp_f32 v{Q}, v{Q}
        s_nop 0
        v_mul_f32 v{Q}, v{Q}, v{Q}
        """)
    a(f"""
    v_lshlrev_b32 v40, 2, v4
    s_lshl_b32 s14, s3, 7
    v_add_u32 v41, s14, v40
    v_add_u32 v42, {RING}, v41
    ds_write_b32 v42, v24
    ds_write_b32 v42, v26 offset:64
    ds_write_b32 v42, v28 offset:{CSB-RING}
    ds_write_b32 v42, v29 offset:{CSB-RING+64}
    ds_write_b32 v42, v30 offset:{CSB-RING+512}
    ds_write_b32 v42, v31 offset:{CSB-RING+512+64}
    s_cmp_lg_u32 s13, 0
    s_cbranch_scc1 k3_nors
    s_lshl_b32 s14, s12, 9
    s_add_u32 s14, s14, {WS_RS}
    s_add_u32 s36, s8, s14
    s_addc_u32 s37, s9, 0
    v_cmp_gt_u32 vcc, 16, v2
    s_and_saveexec_b64 s[18:19], vcc
    global_store_dword v41, v25, s[36:37]
    global_store_dword v41, v27, s[36:37] offset:64
    s_mov_b64 exec, s[18:19]
k3_nors:
    s_waitcnt lgkmcnt(0)
    s_barrier
    """)
    a.label("k3_end")
    a("s_endpgm")
    return a.text()
```

```python
import sys
from common import *
import k1, k2
def main(out, upto=4, stamps=False):
    import common; common.STAMPS[0] = stamps
    sg = 102 if stamps else None
    hdr = open("sequential_preLN__ssm_conv_s4__glu_gated_bilinear__prompt.s.ref").read().split("; Override")[0]
    L = [hdr.rstrip("\n")]
    launches = [f"; @launch kernel=k1_kernel grid=(512,1,1) block=(256,1,1) lds={k1.K1_LDS}",
                f"; @launch kernel=k2_kernel grid=(224,1,1) block=(256,1,1) lds={k2.K2_LDS}"]
    body = [k1.gen_k1(), k2.gen_k2()]
    desc = [kernel_desc("k1_kernel", 128, sg or 48), kernel_desc("k2_kernel", 192, sg or 40)]
    if upto >= 3:
        import k3
        launches.append(f"; @launch kernel=k3_kernel grid=(224,1,1) block=(512,1,1) lds={k3.K3_LDS}")
        body.append(k3.gen_k3()); desc.append(kernel_desc("k3_kernel", k3.NV, sg or 64))
    if upto >= 4:
        import k4
        launches.append(f"; @launch kernel=k4_kernel grid=(224,1,1) block=(256,1,1) lds={k4.K4_LDS}")
        body.append(k4.gen_k4()); desc.append(kernel_desc("k4_kernel", k4.NV, sg or 64))
    L += launches
    L.append('.amdgcn_target "amdgcn-amd-amdhsa--gfx950"')
    L.append(".text")
    L += body
    L.append('.section .rodata,"a"')
    L.append(".p2align 6")
    L += desc
    open(out, "w").write("\n".join(L))
if __name__ == "__main__":
    main(sys.argv[1], int(sys.argv[2]) if len(sys.argv) > 2 else 4, len(sys.argv) > 3)
```
